```python
import torch

def _softmax(x, axis=-1):
    return torch.softmax(x, dim=axis)
def _gelu(x):
    return torch.nn.functional.gelu(x, approximate="tanh")
def _silu(x):
    return torch.nn.functional.silu(x)
def _sigmoid(x):
    return torch.sigmoid(x)
def _layernorm(x, axis=-1, eps=1e-5):
    m = x.mean(dim=axis, keepdim=True)
    v = x.var(dim=axis, keepdim=True, unbiased=False)
    return (x - m) / torch.sqrt(v + eps)
def _scatter_add(tgt, idx, src, axis=0):
    return tgt.clone().index_add_(axis, idx, src)
def _segment_sum(src, seg, n):
    out = torch.zeros((n,) + src.shape[1:], dtype=src.dtype)
    return out.index_add_(0, seg, src)
def _pad(x, pw):
    flat = tuple(v for pair in reversed(pw) for v in pair)
    return torch.nn.functional.pad(x, flat)

kernel_name = 'recurrent_scan__ssm_conv_h3__mixer_s_mlp__prompt'

def setup_inputs():

    _w = (lambda a: (lambda t: t.to(torch.bfloat16) if t.is_floating_point() else t)(torch.as_tensor(a)))
    def _A_setup():
        B, S, D = 1, 2048, 1024
        ks = 4
        return {
            "q": _w((lambda *s: torch.randn(*s, dtype=torch.bfloat16) * 0.05)(B, S, D)),
            "k": _w((lambda *s: torch.randn(*s, dtype=torch.bfloat16) * 0.2)(B, S, D)),
            "v": _w((lambda *s: torch.randn(*s, dtype=torch.bfloat16) * 0.2)(B, S, D)),
            "shift_k": _w((lambda *s: torch.randn(*s, dtype=torch.bfloat16) * 0.2)(D, ks) * 0.5),
            "ssm_k": _w((lambda *s: torch.randn(*s, dtype=torch.bfloat16) * 0.2)(D, S) * (1.0 / S ** 0.5)),
            "ssm_D": _w((lambda *s: torch.randn(*s, dtype=torch.bfloat16) * 0.2)(D)),
        }
    _A_in = _A_setup()

    def _B_setup():
        B, S, D, F = 1, 2048, 1024, 3584
        return {
            "x":  _w((lambda *s: torch.randn(*s, dtype=torch.bfloat16) * 0.05)(B, S, D)),
            "w1": _w((lambda *s: torch.randn(*s, dtype=torch.bfloat16) * 1.6)(D, D) * (D ** -0.5)),
            "w2": _w((lambda *s: torch.randn(*s, dtype=torch.bfloat16) * 1.6)(D, D) * (D ** -0.5)),
            "w3": _w((lambda *s: torch.randn(*s, dtype=torch.bfloat16) * 1.6)(D, F) * (D ** -0.5)),
            "w4": _w((lambda *s: torch.randn(*s, dtype=torch.bfloat16) * 1.6)(F, D) * (F ** -0.5)),
        }
    _B_in = _B_setup()

    return {
        "A_q": _A_in["q"],
        "A_k": _A_in["k"],
        "A_v": _A_in["v"],
        "A_shift_k": _A_in["shift_k"],
        "A_ssm_k": _A_in["ssm_k"],
        "A_ssm_D": _A_in["ssm_D"],
        "B_x": _B_in["x"],
        "B_w1": _B_in["w1"],
        "B_w2": _B_in["w2"],
        "B_w3": _B_in["w3"],
        "B_w4": _B_in["w4"],
    }

def reference(A_q, A_k, A_v, A_shift_k, A_ssm_k, A_ssm_D, B_x, B_w1, B_w2, B_w3, B_w4):
    def _A_ref(q, k, v, shift_k, ssm_k, ssm_D):
        B, S, D = q.shape
        ks = shift_k.shape[-1]
        k_pad = _pad(k, ((0, 0), (ks - 1, 0), (0, 0)))
        k_shift = torch.zeros_like(k)
        for t in range(ks):
            k_shift = k_shift + k_pad[:, t:t + S, :] * shift_k[:, ks - 1 - t][None, None, :]
        kv = k_shift * v
        L = 2 * S
        kv_pad = _pad(kv, ((0, 0), (0, S), (0, 0)))
        kf_pad = _pad(ssm_k, ((0, 0), (0, S)))
        kv_f = (lambda x, axes=(-2,-1): torch.fft.rfft2(x.float(), dim=axes))(kv_pad[:, None, :, :], axes=(1, 2))
        kf_f = (lambda x, axes=(-2,-1): torch.fft.rfft2(x.float(), dim=axes))(kf_pad[:, None, :], axes=(1, 2))
        kf_f = (lambda x, *d: x.permute(*d))(kf_f, 1, 2, 0)
        y_f = kv_f * kf_f[None, :, :, :]
        y = (lambda x, s, axes=(-2,-1): torch.fft.irfft2(x, s=s, dim=axes).to(torch.bfloat16))(y_f, (1, L), axes=(1, 2))[:, 0, :S, :]
        y = y + kv * ssm_D[None, None, :]
        return q * y

    def _B_ref(x, w1, w2, w3, w4):
        B, S, D = x.shape
        h = _gelu(_layernorm(x, axis=-1) @ w1)
        c = D // 4
        g0 = _pad(h[:, :, 0*c:1*c], ((0, 0), (1, 0), (0, 0)))[:, :S, :]
        g1 = _pad(h[:, :, 1*c:2*c], ((0, 0), (0, 1), (0, 0)))[:, 1:, :]
        g2 = _pad(h[:, :, 2*c:3*c], ((0, 0), (2, 0), (0, 0)))[:, :S, :]
        g3 = _pad(h[:, :, 3*c:   ], ((0, 0), (0, 2), (0, 0)))[:, 2:, :]
        hs = torch.concatenate([g0, g1, g2, g3], axis=-1) @ w2
        x1 = x + hs
        h2 = _gelu(_layernorm(x1, axis=-1) @ w3) @ w4
        return x1 + h2

    x = A_q
    xn = _layernorm(x, axis=-1)
    s = _A_ref(xn, A_k, A_v, A_shift_k, A_ssm_k, A_ssm_D)
    g = _silu(_B_ref(xn, B_w1, B_w2, B_w3, B_w4))
    return x + s * g
```

```python
HEADER_COMMENT = open('recurrent_scan__ssm_conv_h3__mixer_s_mlp__prompt.s.ref').read().split('; @launch')[0]
class Kernel:
    def __init__(self, name, grid, block, lds, vgpr=256, agpr=0, sgpr=102):
        self.name=name; self.grid=grid; self.block=block; self.lds=lds
        self.vgpr=vgpr; self.agpr=agpr; self.sgpr=sgpr
        self.lines=[]
        self._lab=0
    def __call__(self, s):
        for l in s.strip('\n').split('\n'):
            self.lines.append('  '+l.strip())
    def label(self, l):
        self.lines.append(l+':')
    def newlabel(self, base='L'):
        self._lab+=1
        return f'{self.name}_{base}{self._lab}'
    def text(self):
        out=[f'.globl {self.name}', '.p2align 8', f'.type {self.name},@function', f'{self.name}:']
        out+=self.lines
        return '\n'.join(out)+'\n'
    def desc(self):
        acc=(self.vgpr+3)//4*4
        nfv=acc+self.agpr if self.agpr else self.vgpr
        return f'''.p2align 6
.amdhsa_kernel {self.name}
  .amdhsa_next_free_vgpr {nfv}
  .amdhsa_next_free_sgpr {self.sgpr}
  .amdhsa_accum_offset {acc}
  .amdhsa_group_segment_fixed_size 0
  .amdhsa_kernarg_size 112
  .amdhsa_user_sgpr_count 2
  .amdhsa_user_sgpr_kernarg_segment_ptr 1
  .amdhsa_system_sgpr_workgroup_id_x 1
  .amdhsa_float_denorm_mode_32 3
  .amdhsa_float_denorm_mode_16_64 3
.end_amdhsa_kernel
'''
def build_file(launches, path):
    hdr='\n'.join(l for l in HEADER_COMMENT.split('\n') if l.strip() and 'Override launch' not in l and 'grid=ceil' not in l)+'\n'
    s=hdr
    for k in launches:
        s+=f'; @launch kernel={k.name} grid=({k.grid},1,1) block=({k.block},1,1) lds={k.lds}\n'
    s+='.amdgcn_target "amdgcn-amd-amdhsa--gfx950"\n.text\n'
    seen=[]
    for k in launches:
        if k not in seen: seen.append(k)
    for k in seen: s+=k.text()
    s+='.section .rodata,"a"\n'
    for k in seen: s+=k.desc()
    open(path,'w').write(s)
    return s
```

```python
import sys, math, struct
from asmlib import *
import hazard

KA=dict(q=0,k=8,v=16,shk=24,ssmk=32,ssmD=40,bx=48,w1=56,w2=64,w3=72,w4=80,out=88,dbg=96,ws=104)
PANEL=2048*128
PANEL_H=(2048+16)*128
WS_H  =0x0000000
WS_X1 =0x0500000
WS_H3 =0x0A00000
WS_KVT=0x1900000
WS_Y2T=0x1E00000
WS_ST1=0x2300000
WS_ST3=0x2310000
WS_CS3=0x2360000
WS_STAMP=0x8000000
WS_SIZE=0x10000000
ST='sc1'
STAMPS=False

def f2u(x): return struct.unpack('<I',struct.pack('<f',x))[0]
LOG2E=1.4426950408889634
GA=-2.0*math.sqrt(2.0/math.pi)*LOG2E
GB=GA*0.044715

class G:
    def __init__(self, **kw): self.__dict__.update(kw)

S_WS=4; S_X=8; S_W=12; S_A=16; S_B=20; S_C=24
s_xo=30; s_wo=31; s_cnt=32; s_wave=33; s_rb=34; s_cb=35; s_t0=36; s_t1=37; s_t2=38; s_t3=39
s_lw=40; s_lx=41; s_lwb=42; s_wm=40; s_wn=41
s_c0=44

def srd(k, base, arg, size):
    k(f's_load_dwordx2 s[{base}:{base+1}], s[0:1], {KA[arg]}')
    k(f's_mov_b32 s{base+2}, {size}')
    k(f's_mov_b32 s{base+3}, 0x20000')

def wswz_bits(Nt): return {64:[(1,0),(3,1)], 128:[(0,0),(1,1),(3,2)], 224:[(3,0)]}[Nt]
def emit_f(k, dst, krow, tmp, Nt):
    first=True
    if Nt==128:
        k(f'v_and_b32 v{dst}, 3, v{krow}')
        k(f'v_bfe_u32 v{tmp}, v{krow}, 3, 1')
        k(f'v_lshl_or_b32 v{dst}, v{tmp}, 2, v{dst}')
        return
    for sb,db in wswz_bits(Nt):
        if first:
            k(f'v_bfe_u32 v{dst}, v{krow}, {sb}, 1'); assert db==0
            first=False
        else:
            k(f'v_bfe_u32 v{tmp}, v{krow}, {sb}, 1')
            k(f'v_lshl_or_b32 v{dst}, v{tmp}, {db}, v{dst}')

def mkcfg(Nt,K,R,wpitch,xmode,xadv):
    c=G(Nt=Nt,K=K,R=R,wpitch=wpitch,xmode=xmode,xadv=xadv)
    c.NT=Nt//32; c.S=K//64
    c.stage=16384+64*Nt*2
    c.nwb={64:2,128:4,224:2}[Nt]
    c.split={64:73728,128:65536,224:90112}[Nt]
    c.ring=R*c.stage
    c.sX=S_X if xmode=='rows' else S_WS
    c.aux=None
    c.bar_at={64:1,128:3,224:4}[Nt]
    return c

def loader_setup(k,c):
    L=1; t0,t1,t2,t3=2,3,4,5
    Nt=c.Nt; CPR=Nt//8; NWL=Nt//32
    k(f's_sub_u32 s{s_lw}, s{s_wave}, 4')
    k(f's_lshl_b32 s{s_lx}, s{s_lw}, 12')
    if c.xmode=='rows':
        k(f'v_lshrrev_b32 v{t0}, 3, v{L}')
        k(f'v_and_b32 v{t1}, 7, v{L}')
        k(f'v_xor_b32 v{t1}, v{t1}, v{t0}')
        k(f'v_lshlrev_b32 v{t1}, 4, v{t1}')
        k(f's_lshl_b32 s{s_t0}, s{s_lw}, 5')
        k(f'v_add_u32 v{t0}, s{s_t0}, v{t0}')
        k(f'v_lshl_add_u32 v6, v{t0}, 11, v{t1}')
        for i in range(1,4): k(f'v_add_u32 v{6+i}, {i*8*2048-i*1024}, v6')
    else:
        k(f'v_lshl_add_u32 v6, v{L}, 4, s{s_lx}')
    k(f's_mul_i32 s{s_t0}, s{s_lw}, {NWL*64}')
    k(f's_mov_b32 s{s_t1}, {c.wpitch}')
    for i in range(NWL):
        k(f'v_add_u32 v{t0}, s{s_t0}, v{L}')
        if i: k(f'v_add_u32 v{t0}, {i*64}, v{t0}')
        if CPR==28:
            k(f'v_mul_u32_u24 v{t1}, 2341, v{t0}')
            k(f'v_lshrrev_b32 v{t1}, 16, v{t1}')
            k(f'v_mul_u32_u24 v{t2}, 28, v{t1}')
            k(f'v_sub_u32 v{t0}, v{t0}, v{t2}')
        else:
            sh={8:3,16:4}[CPR]
            k(f'v_lshrrev_b32 v{t1}, {sh}, v{t0}')
            k(f'v_and_b32 v{t0}, {CPR-1}, v{t0}')
        emit_f(k,t2,t1,t3,Nt)
        k(f'v_lshlrev_b32 v{t2}, 1, v{t2}')
        k(f'v_xor_b32 v{t0}, v{t0}, v{t2}')
        k(f'v_mul_lo_u32 v{t1}, v{t1}, s{s_t1}')
        k(f'v_lshl_add_u32 v{10+i}, v{t0}, 4, v{t1}')
        if i%4: k(f'v_subrev_u32 v{10+i}, {(i%4)*1024}, v{10+i}')
    k(f's_mul_i32 s{s_lwb}, s{s_lw}, {NWL*1024}')
    k(f's_add_u32 s{s_lwb}, s{s_lwb}, 16384')

def loader_issue(k,c,slot):
    NWL=c.Nt//32; base=slot*c.stage
    k(f's_add_u32 m0, s{s_lx}, {base}')
    for i in range(4):
        v=6+i if c.xmode=='rows' else 6
        k(f'buffer_load_dwordx4 v{v}, s[{c.sX}:{c.sX+3}], s{s_xo} offen offset:{i*1024} lds')
    for i in range(NWL):
        if i%4==0: k(f's_add_u32 m0, s{s_lwb}, {base+i*1024}')
        k(f'buffer_load_dwordx4 v{10+i}, s[{S_W}:{S_W+3}], s{s_wo} offen offset:{(i%4)*1024} lds')
    k(f's_add_u32 s{s_xo}, s{s_xo}, {c.xadv}')
    k(f's_add_u32 s{s_wo}, s{s_wo}, {64*c.wpitch}')

def loader_main(k,c):
    S=c.S; R=c.R; per=4+c.Nt//32
    aux=c.aux or (lambda slot: None)
    loader_issue(k,c,0); loader_issue(k,c,1)
    k(f's_waitcnt vmcnt({per})')
    k('s_barrier')
    for s in range(2,R): loader_issue(k,c,s)
    aux(0)
    k(f's_waitcnt vmcnt({(R-2)*per}) lgkmcnt(0)')
    nloop=(S-R)//R
    def it(s, steady):
        k('s_barrier')
        if steady or s+R<S: loader_issue(k,c,s%R)
        if steady or s+1<S: aux((s+1)%R)
        if steady: k(f's_waitcnt vmcnt({(R-2)*per}) lgkmcnt(0)')
        else:
            extra=c.tail(s) if getattr(c,'tail',None) else 0
            last=min(s+R,S-1)
            if s+2<=S-1: k(f's_waitcnt vmcnt({(last-(s+2))*per+extra}) lgkmcnt(0)')
            else: k('s_waitcnt lgkmcnt(0)')
    k(f's_mov_b32 s{s_cnt}, {nloop}')
    Lb=k.newlabel('ld'); k('.p2align 3'); k.label(Lb)
    for s in range(R): it(s,True)
    k(f's_sub_u32 s{s_cnt}, s{s_cnt}, 1')
    k(f's_cmp_lg_u32 s{s_cnt}, 0')
    k(f's_cbranch_scc1 {Lb}')
    for s in range(nloop*R,S): it(s,False)

def compute_setup(k,c):
    L=1; t0,t1,t2,t3=2,3,4,5
    Nt=c.Nt; NT=c.NT; P=Nt*2
    k(f's_lshr_b32 s{s_wm}, s{s_wave}, 1')
    k(f's_and_b32 s{s_wn}, s{s_wave}, 1')
    k(f'v_and_b32 v{t0}, 15, v{L}')
    k(f'v_lshrrev_b32 v{t1}, 4, v{L}')
    k(f'v_and_b32 v{t2}, 7, v{L}')
    k(f'v_xor_b32 v{t2}, v{t2}, v{t1}')
    k(f'v_lshlrev_b32 v{t2}, 4, v{t2}')
    k(f'v_lshl_add_u32 v{t2}, v{t0}, 7, v{t2}')
    k(f's_lshl_b32 s{s_t0}, s{s_wm}, 13')
    k(f'v_add_u32 v{c.vxa}, s{s_t0}, v{t2}')
    k(f'v_xor_b32 v{c.vxa+1}, 64, v{c.vxa}')
    k(f'v_bfe_u32 v{t0}, v{L}, 2, 2')
    k(f'v_lshl_add_u32 v{t0}, v{t1}, 3, v{t0}')
    emit_f(k,t2,t0,t3,Nt)
    k(f'v_mul_u32_u24 v{t0}, {P}, v{t0}')
    k(f'v_and_b32 v{t1}, 3, v{L}')
    k(f'v_lshl_add_u32 v{t0}, v{t1}, 3, v{t0}')
    k(f'v_add_u32 v{t0}, 16384, v{t0}')
    k(f's_mul_i32 s{s_t0}, s{s_wn}, {NT}')
    for b in range(c.nwb):
        k(f's_add_u32 s{s_t1}, s{s_t0}, {b}')
        k(f'v_xor_b32 v{t1}, s{s_t1}, v{t2}')
        k(f'v_lshl_add_u32 v{c.vwa+b}, v{t1}, 5, v{t0}')
    for i in range(2): k(f'v_add_u32 v{c.vxa2+i}, {c.split}, v{c.vxa+i}')
    for b in range(c.nwb): k(f'v_add_u32 v{c.vwa2+b}, {c.split}, v{c.vwa+b}')

def frag_reads(c,slot,ks,fset):
    P=c.Nt*2; so=slot*c.stage
    hi=so>=c.split; ofs=so-(c.split if hi else 0)
    xa=(c.vxa2 if hi else c.vxa)+ks; wa=(c.vwa2 if hi else c.vwa)
    xs=[];ws=[]
    for mt in range(4):
        r=c.fx[fset]+4*mt
        xs.append((f'ds_read_b128 a[{r}:{r+3}], v{xa} offset:{ofs+mt*2048}',('x',fset,mt)))
    for t in range(c.NT):
        r=c.fw[fset]+4*t; b=t%c.nwb
        o=ofs+ks*32*P+(t-b)*32
        assert o+4*P<65536
        ws.append([(f'ds_read_b64_tr_b16 a[{r}:{r+1}], v{wa+b} offset:{o}',('w',fset,t)),
                   (f'ds_read_b64_tr_b16 a[{r+2}:{r+3}], v{wa+b} offset:{o+4*P}',('w',fset,t))])
    out=ws[0]+xs
    for w in ws[1:]: out+=w
    return out

def mfmas(c,fset):
    out=[]
    for t in range(c.NT):
        for mt in range(4):
            a=c.acc+4*(mt*c.NT+t); w=c.fw[fset]+4*t; x=c.fx[fset]+4*mt
            out.append((f'v_mfma_f32_16x16x32_bf16 v[{a}:{a+3}], a[{w}:{w+3}], a[{x}:{x+3}], v[{a}:{a+3}]',[('w',fset,t),('x',fset,mt)]))
    return out

class LQ:
    def __init__(self,k): self.k=k; self.q=[]
    def issue(self,ins,tag): self.k(ins); self.q.append(tag)
    def need(self,tags):
        idx=-1
        for i,t in enumerate(self.q):
            if t in tags: idx=i
        if idx>=0:
            n=len(self.q)-1-idx
            n=min(n,15)
            self.k(f's_waitcnt lgkmcnt({n})')
            self.q=self.q[len(self.q)-n:] if n else []
    def drain(self):
        if self.q: self.k('s_waitcnt lgkmcnt(0)')
        self.q=[]

def phase(k,lq,mf,rd,bar_at=None,pre_bar=None):
    ri=0; n=len(mf)
    start=0 if bar_at is None else bar_at
    slots=n-start
    for i,(m,tags) in enumerate(mf):
        lq.need(tags); k(m)
        if bar_at is not None and i==bar_at:
            lq.drain()
            if pre_bar: k(pre_bar)
            k('s_barrier')
        if i>=start:
            left=len(rd)-ri; rem=n-i
            cnt=1 if left<=rem else -(-left//rem)
            for _ in range(cnt):
                if ri<len(rd): lq.issue(*rd[ri]); ri+=1
    assert ri==len(rd)

def compute_main(k,c,last_pre_bar=None):
    S=c.S; R=c.R
    lq=LQ(k)
    k('s_barrier')
    if STAMPS: k('s_memtime s[62:63]'); k('s_waitcnt lgkmcnt(0)')
    for r in frag_reads(c,0,0,0): lq.issue(*r)
    q0=list(lq.q)
    def stage(s,last=False):
        slot=s%R
        phase(k,lq,mfmas(c,0),frag_reads(c,slot,1,1))
        phase(k,lq,mfmas(c,1),[] if last else frag_reads(c,(s+1)%R,0,0),bar_at=c.bar_at,pre_bar=last_pre_bar if last else None)
        if not last: assert lq.q==q0,(lq.q,q0)
    nloop=(S-1)//R
    k(f's_mov_b32 s{s_cnt}, {nloop}')
    Lb=k.newlabel('cm'); k('.p2align 3'); k.label(Lb)
    for s in range(R): stage(s)
    k(f's_sub_u32 s{s_cnt}, s{s_cnt}, 1')
    k(f's_cmp_lg_u32 s{s_cnt}, 0')
    k(f's_cbranch_scc1 {Lb}')
    for s in range(nloop*R,S): stage(s,s==S-1)
    if STAMPS: k('s_memtime s[64:65]'); k('s_waitcnt lgkmcnt(0)')

def tile_map(k, ntn, xr, xc, idx='s17'):
    nxc=ntn//xc
    k(f's_lshr_b32 s{s_t0}, s28, {int(math.log2(nxc))}')
    k(f's_mul_i32 s{s_t0}, s{s_t0}, {xr}')
    k(f's_lshr_b32 s{s_t1}, s29, {int(math.log2(xc))}')
    k(f's_add_u32 s{s_rb}, s{s_t0}, s{s_t1}')
    k(f's_and_b32 s{s_t0}, s28, {nxc-1}')
    k(f's_mul_i32 s{s_t0}, s{s_t0}, {xc}')
    k(f's_and_b32 s{s_t1}, s29, {xc-1}')
    k(f's_add_u32 s{s_cb}, s{s_t0}, s{s_t1}')

def entry(k):
    k('s_cmp_ge_u32 s2, 256')
    k(f's_cbranch_scc1 {k.name}_end')
    if STAMPS: k('s_memtime s[60:61]'); k('s_memrealtime s[70:71]')
    srd(k,S_WS,'ws',WS_SIZE)
    k('v_lshrrev_b32 v2, 6, v0')
    k('v_and_b32 v1, 63, v0')
    k(f'v_readfirstlane_b32 s{s_wave}, v2')
    k('s_and_b32 s28, s2, 7')
    k('s_lshr_b32 s29, s2, 3')

def stamp_out(k,slot,wavesel=0):
    if not STAMPS: return
    k('s_memtime s[66:67]')
    k('s_waitcnt vmcnt(0)')
    k('s_memtime s[68:69]')
    k('s_memrealtime s[72:73]')
    k('s_waitcnt lgkmcnt(0)')
    k(f's_cmp_lg_u32 s{s_wave}, {wavesel}')
    k(f's_cbranch_scc1 {k.name}_end')
    k(f'''s_sub_u32 s62, s62, s60
    s_sub_u32 s64, s64, s60
    s_sub_u32 s66, s66, s60
    s_sub_u32 s68, s68, s60
    v_mov_b32 v20, s62
    v_mov_b32 v21, s64
    v_mov_b32 v22, s66
    v_mov_b32 v23, s68
    v_mov_b32 v24, s70
    v_mov_b32 v25, s72
    v_mov_b32 v26, 0
    v_mov_b32 v27, 0
    s_lshl_b32 s74, s2, 5
    s_add_u32 s74, s74, {WS_STAMP+slot*8192}
    v_mov_b32 v2, 0
    s_mov_b64 exec, 1
    buffer_store_dwordx4 v[20:23], v2, s[4:7], s74 offen
    buffer_store_dwordx4 v[24:27], v2, s[4:7], s74 offen offset:16''')

def rbf(k,dst,src):
    k(f'v_cvt_pk_bf16_f32 v{dst}, v{src}, v{src}')
    k(f'v_and_b32 v{dst}, 0xffff0000, v{dst}')

def ln_finish(k, vs, vq, t, out_m, out_rs):
    k(f'v_mul_f32 v{vs}, {f2u(1/1024):#x}, v{vs}')
    k(f'v_mul_f32 v{vq}, {f2u(1/1024):#x}, v{vq}')
    k(f'v_fma_f32 v{vq}, -v{vs}, v{vs}, v{vq}')
    k(f'v_max_f32 v{vq}, 0, v{vq}')
    rbf(k,out_m,vs)
    rbf(k,t,vq)
    k(f'v_add_f32 v{t}, {f2u(1e-5):#x}, v{t}')
    rbf(k,t,t)
    k(f'v_sqrt_f32 v{t}, v{t}')
    rbf(k,t,t)
    k(f'v_rcp_f32 v{out_rs}, v{t}')

def gelu_pairs(k, xs, tmp):
    n=len(xs)
    T=[tmp+2*i for i in range(n)]
    for x,t in zip(xs,T): k(f'v_pk_mul_f32 v[{t}:{t+1}], v[{x}:{x+1}], v[{x}:{x+1}]')
    for x,t in zip(xs,T): k(f'v_pk_fma_f32 v[{t}:{t+1}], v[{t}:{t+1}], s[44:45], v[{V_GA}:{V_GA+1}]')
    for x,t in zip(xs,T): k(f'v_pk_mul_f32 v[{t}:{t+1}], v[{t}:{t+1}], v[{x}:{x+1}]')
    for t in T:
        k(f'v_exp_f32 v{t}, v{t}'); k(f'v_exp_f32 v{t+1}, v{t+1}')
    for t in T: k(f'v_pk_add_f32 v[{t}:{t+1}], v[{t}:{t+1}], s[48:49]')
    for t in T:
        k(f'v_rcp_f32 v{t}, v{t}'); k(f'v_rcp_f32 v{t+1}, v{t+1}')
    for x,t in zip(xs,T): k(f'v_pk_mul_f32 v[{x}:{x+1}], v[{x}:{x+1}], v[{t}:{t+1}]')
V_GA=2

def gelu_consts(k):
    k(f's_mov_b32 s44, {f2u(GB):#x}'); k(f's_mov_b32 s45, {f2u(GB):#x}')
    k(f's_mov_b32 s48, 1.0'); k('s_mov_b32 s49, 1.0')
    k(f'v_mov_b32 v{V_GA}, {f2u(GA):#x}'); k(f'v_mov_b32 v{V_GA+1}, {f2u(GA):#x}')

def ln_gelu_epilogue(k,c,lds_rs,lds_cs,ncs,addr,tmp,csr,rsr,soff,late=()):
    NT=c.NT
    k('v_and_b32 v4, 15, v1')
    k(f's_lshl_b32 s{s_t0}, s{s_wm}, 9')
    k(f's_add_u32 s{s_t0}, s{s_t0}, {lds_rs}')
    k(f'v_lshl_add_u32 v4, v4, 3, s{s_t0}')
    k('v_lshrrev_b32 v5, 4, v1')
    k(f's_mul_i32 s{s_t0}, s{s_wn}, {NT*64}')
    k(f's_add_u32 s{s_t0}, s{s_t0}, {lds_cs}')
    k(f'v_lshl_add_u32 v5, v5, 4, s{s_t0}')
    for mt in range(4): k(f'ds_read_b64 v[{rsr+2*mt}:{rsr+2*mt+1}], v4 offset:{mt*128}')
    for t in range(NT):
        if t not in late: k(f'ds_read_b128 v[{csr[t]}:{csr[t]+3}], v5 offset:{t*64}')
    for p in range(1,ncs):
        for t in range(NT):
            k(f'ds_read_b128 v[{tmp+4*(t%4)}:{tmp+4*(t%4)+3}], v5 offset:{p*c.Nt*4+t*64}')
            if t%4==3 or t==NT-1:
                k('s_waitcnt lgkmcnt(0)')
                for u in range(t-t%4,t+1):
                    for h in (0,2): k(f'v_pk_add_f32 v[{csr[u]+h}:{csr[u]+h+1}], v[{csr[u]+h}:{csr[u]+h+1}], v[{tmp+4*(u%4)+h}:{tmp+4*(u%4)+h+1}]')
    k('s_waitcnt lgkmcnt(0)')
    gelu_consts(k)
    def pre(tile,t,mt):
        a=c.acc+4*tile; rs=rsr+2*mt
        for h in (0,2):
            k(f'v_pk_mul_f32 v[{tmp+h}:{tmp+h+1}], v[{csr[t]+h}:{csr[t]+h+1}], v[{rs}:{rs+1}] op_sel:[0,1] op_sel_hi:[1,1]')
        for h in (0,2):
            k(f'v_pk_fma_f32 v[{a+h}:{a+h+1}], v[{a+h}:{a+h+1}], v[{rs}:{rs+1}], v[{tmp+h}:{tmp+h+1}] op_sel:[0,0,0] op_sel_hi:[1,0,1]')
    cnt=[0]
    def pair(tA,tB,av,mt_off):
        (tileA,t_a,mt_a),(tileB,t_b,mt_b)=tA,tB
        pre(tileA,t_a,mt_a); pre(tileB,t_b,mt_b)
        a=c.acc+4*tileA; b=c.acc+4*tileB
        gelu_pairs(k,[a,a+2,b,b+2],tmp)
        o=tmp+8+4*(cnt[0]%2); cnt[0]+=1
        k(f'v_cvt_pk_bf16_f32 v{o}, v{a}, v{a+1}')
        k(f'v_cvt_pk_bf16_f32 v{o+1}, v{a+2}, v{a+3}')
        k(f'v_cvt_pk_bf16_f32 v{o+2}, v{b}, v{b+1}')
        k(f'v_cvt_pk_bf16_f32 v{o+3}, v{b+2}, v{b+3}')
        k(f's_add_u32 s{s_t1}, s{soff}, {mt_off*2048}')
        k(f'v_permlane16_swap_b32 v{o}, v{o+2}')
        k(f'v_permlane16_swap_b32 v{o+1}, v{o+3}')
        k(f'buffer_store_dwordx4 v[{o}:{o+3}], v{av}, s[{S_WS}:{S_WS+3}], s{s_t1} offen {ST}')
    for mt in range(4):
        for tp in range(NT//2):
            t=2*tp
            pair((mt*NT+t,t,mt),(mt*NT+t+1,t+1,mt),addr[tp],mt)
            if late and mt==0 and tp==0:
                for u in late: k(f'ds_read_b128 v[{csr[u]}:{csr[u]+3}], v5 offset:{u*64}')
            if late and mt==0 and tp==1: k('s_waitcnt lgkmcnt(0)')
        if NT%2 and mt%2==1:
            t=NT-1
            pair(((mt-1)*NT+t,t,mt-1),(mt*NT+t,t,mt),addr[NT//2],mt-1)

def finish(k):
    k.label(k.name+'_end')
    k('s_endpgm')
    k.lines,n=hazard.fix(k.lines)
    return k

def reduce8_to2(k, a):
    for i in range(4): k(f'v_permlane32_swap_b32 v{a+i}, v{a+4+i}')
    for i in range(4): k(f'v_add_f32 v{a+i}, v{a+i}, v{a+4+i}')
    for i in range(2): k(f'v_permlane16_swap_b32 v{a+i}, v{a+2+i}')
    for i in range(2): k(f'v_add_f32 v{a+i}, v{a+i}, v{a+2+i}')

def gen_k1():
    c=mkcfg(128,1024,4,2048,'rows',128)
    LDS_RS=c.ring; LDS_CS=c.ring+1024
    k=Kernel('k1_kernel',256,512,c.ring+1024+2048,vgpr=192,agpr=64)
    entry(k)
    k('s_cmp_ge_u32 s29, 16')
    k('s_cbranch_scc1 k1_prep')
    srd(k,S_X,'q',2048*2048)
    srd(k,S_W,'w1',1024*2048)
    tile_map(k,8,4,4)
    k(f's_lshl_b32 s{s_xo}, s{s_rb}, 18')
    k(f's_lshl_b32 s{s_wo}, s{s_cb}, 8')
    k(f's_cmp_ge_u32 s{s_wave}, 4')
    k('s_cbranch_scc1 k1_loader')
    c.vxa=6; c.vxa2=8; c.vwa=10; c.vwa2=14; c.acc=32; c.fx=(0,32); c.fw=(16,48)
    compute_setup(k,c)
    for i in range(64): k(f'v_mov_b32 v{c.acc+i}, 0')
    k(f's_lshr_b32 s{s_t0}, s{s_cb}, 2')
    k(f's_add_u32 s{s_t0}, s{s_t0}, 1')
    k(f's_sub_u32 s{s_t1}, 0, s{s_t0}')
    k(f's_bitcmp1_b32 s{s_cb}, 1')
    k(f's_cselect_b32 s{s_t0}, s{s_t1}, s{s_t0}')
    k(f's_add_u32 s{s_t0}, s{s_t0}, 8')
    k('v_and_b32 v2, 15, v1')
    k(f'v_add_u32 v2, s{s_t0}, v2')
    k('v_lshrrev_b32 v3, 4, v1')
    k('v_and_b32 v4, 1, v3')
    k('v_lshrrev_b32 v3, 1, v3')
    k('v_lshl_or_b32 v3, v4, 1, v3')
    k('v_and_b32 v4, 7, v2')
    k('v_xor_b32 v3, v3, v4')
    k('v_lshlrev_b32 v3, 4, v3')
    k('v_lshl_add_u32 v28, v2, 7, v3')
    k('v_xor_b32 v29, 64, v28')
    k(f's_lshl_b32 s{s_t2}, s{s_cb}, 1')
    k(f's_add_u32 s{s_t2}, s{s_t2}, s{s_wn}')
    k(f's_mul_i32 s{s_t2}, s{s_t2}, {PANEL_H}')
    k(f's_lshl_b32 s{s_t0}, s{s_rb}, 14')
    k(f's_add_u32 s{s_t2}, s{s_t2}, s{s_t0}')
    k(f's_lshl_b32 s{s_t0}, s{s_wm}, 13')
    k(f's_add_u32 s{s_t2}, s{s_t2}, s{s_t0}')
    if WS_H: k(f's_add_u32 s{s_t2}, s{s_t2}, {WS_H}')
    k('s_waitcnt lgkmcnt(0)')
    compute_main(k,c)
    k('s_barrier')
    ln_gelu_epilogue(k,c,LDS_RS,LDS_CS,4,[28,29],96,[112,116,120,124],20,s_t2)
    stamp_out(k,0)
    k('s_endpgm')
    k.label('k1_loader')
    loader_setup(k,c)
    k(f'v_lshl_add_u32 v20, v1, 4, s{s_lx}')
    k(f'v_add_u32 v21, {c.split}, v20')
    k('v_lshrrev_b32 v2, 4, v1')
    k('v_and_b32 v3, 15, v1')
    k('v_lshlrev_b32 v4, 1, v2')
    k('v_xor_b32 v3, v3, v4')
    k('v_lshlrev_b32 v3, 4, v3')
    k('v_lshl_add_u32 v3, v2, 8, v3')
    k(f'v_add_u32 v22, s{s_lwb}, v3')
    k('v_xor_b32 v23, 128, v22')
    k(f'v_add_u32 v24, {c.split}, v22')
    k(f'v_add_u32 v25, {c.split}, v23')
    for i in range(16): k(f'v_mov_b32 v{64+i}, 0')
    k('s_mov_b32 s44, 0x3f803f80'); k('s_mov_b32 s45, 0x00003f80'); k('s_mov_b32 s46, 0x3f800000')
    def aux(slot):
        so=slot*c.stage; hi=so>=c.split; ofs=so-(c.split if hi else 0)
        for i in range(4): k(f'ds_read_b128 v[{32+4*i}:{35+4*i}], v{21 if hi else 20} offset:{ofs+1024*i}')
        for i in range(4): k(f'ds_read_b128 v[{48+4*i}:{51+4*i}], v{(24 if hi else 22)+(i>>1)} offset:{ofs+1024*i}')
        k('s_waitcnt lgkmcnt(4)')
        for d in range(4):
            for i in range(4):
                k(f'v_dot2c_f32_bf16 v{64+2*i}, s44, v{32+4*i+d}')
                k(f'v_dot2c_f32_bf16 v{65+2*i}, v{32+4*i+d}, v{32+4*i+d}')
        k('s_waitcnt lgkmcnt(0)')
        for i in range(4):
            for d in range(4):
                k(f'v_dot2c_f32_bf16 v{72+2*d}, s45, v{48+4*i+d}')
                k(f'v_dot2c_f32_bf16 v{73+2*d}, s46, v{48+4*i+d}')
    c.aux=aux
    k('s_waitcnt lgkmcnt(0)')
    loader_main(k,c)
    reduce8_to2(k,72)
    k('v_and_b32 v2, 15, v1')
    k('v_lshrrev_b32 v3, 4, v1')
    k('v_lshlrev_b32 v3, 3, v3')
    k('v_lshl_add_u32 v2, v2, 5, v3')
    k(f's_lshl_b32 s{s_t0}, s{s_lw}, 9')
    k(f's_add_u32 s{s_t0}, s{s_t0}, {LDS_CS}')
    k(f'v_add_u32 v2, s{s_t0}, v2')
    k('ds_write_b64 v2, v[72:73]')
    for m in ('quad_perm:[1,0,3,2]','quad_perm:[2,3,0,1]','row_half_mirror'):
        for i in range(8): k(f'v_add_f32_dpp v{64+i}, v{64+i}, v{64+i} {m} row_mask:0xf bank_mask:0xf')
    k('v_and_b32 v2, 1, v1'); k('v_cmp_eq_u32 vcc, 1, v2')
    for h in range(2):
        k(f'v_cndmask_b32 v{64+h}, v{64+h}, v{66+h}, vcc')
        k(f'v_cndmask_b32 v{68+h}, v{68+h}, v{70+h}, vcc')
    k('v_and_b32 v2, 2, v1'); k('v_cmp_eq_u32 vcc, 2, v2')
    for h in range(2): k(f'v_cndmask_b32 v{64+h}, v{64+h}, v{68+h}, vcc')
    ln_finish(k,64,65,66,32,33)
    k('v_sub_f32 v64, v64, v32')
    k('v_mul_f32 v64, v64, v33')
    k('v_mul_f32 v65, v65, v33')
    k('v_mul_f32 v65, v65, v33')
    rbf(k,64,64); rbf(k,65,65)
    k(f'v_add_f32 v65, {f2u(1e-5):#x}, v65')
    rbf(k,65,65)
    k('v_sqrt_f32 v65, v65')
    rbf(k,65,65)
    k('v_rcp_f32 v65, v65')
    k('v_fma_f32 v64, v32, v33, v64')
    k('v_mul_f32 v34, v33, v65')
    k('v_mul_f32 v35, v64, v65')
    k('v_sub_f32 v35, 0, v35')
    k('v_and_b32 v2, 3, v1')
    k('v_lshrrev_b32 v3, 3, v1')
    k('v_lshl_add_u32 v2, v2, 3, v3')
    k(f's_lshl_b32 s{s_t0}, s{s_lw}, 5')
    k(f'v_add_u32 v2, s{s_t0}, v2')
    k('v_lshlrev_b32 v2, 3, v2')
    k(f'v_add_u32 v3, {LDS_RS}, v2')
    k('ds_write_b64 v3, v[34:35]')
    k(f's_cmp_lg_u32 s{s_cb}, 0')
    k('s_cbranch_scc1 k1_nost')
    k(f's_lshl_b32 s{s_t0}, s{s_rb}, 10')
    k(f's_add_u32 s{s_t0}, s{s_t0}, {WS_ST1}')
    k(f'buffer_store_dwordx2 v[32:33], v2, s[{S_WS}:{S_WS+3}], s{s_t0} offen {ST}')
    k.label('k1_nost')
    k('s_waitcnt lgkmcnt(0)')
    k('s_barrier')
    k('s_endpgm')
    k.label('k1_prep')
    srd(k,S_X,'k',2048*2048)
    srd(k,S_W,'v',2048*2048)
    srd(k,S_A,'shk',1024*8)
    srd(k,S_B,'w3',1024*7168)
    k('s_sub_u32 s29, s29, 16')
    k('s_lshl_b32 s29, s29, 3')
    k('s_add_u32 s29, s29, s28')
    k(f's_lshr_b32 s{s_rb}, s29, 4')
    k(f's_and_b32 s{s_cb}, s29, 15')
    k('v_and_b32 v2, 7, v0')
    k('v_lshrrev_b32 v3, 3, v0')
    k(f's_lshl_b32 s{s_t0}, s{s_rb}, 19')
    k(f's_lshl_b32 s{s_t1}, s{s_cb}, 7')
    k(f's_add_u32 s{s_t0}, s{s_t0}, s{s_t1}')
    k('v_lshlrev_b32 v4, 13, v3')
    k('v_lshl_add_u32 v4, v2, 4, v4')
    k(f'v_add_u32 v6, s{s_t0}, v4')
    k('v_subrev_u32 v7, 6144, v6')
    k('v_subrev_u32 v8, 2048, v6')
    k('v_add_u32 v9, 4096, v6')
    k('v_lshlrev_b32 v10, 6, v2')
    k(f's_lshl_b32 s{s_t2}, s{s_cb}, 9')
    k('s_cmp_ge_u32 s29, 56')
    k(f's_cselect_b32 s{s_t0}, 1, 0')
    k(f's_mul_i32 s{s_t1}, s{s_t0}, 56')
    k(f's_sub_u32 s{s_t1}, s29, s{s_t1}')
    k(f's_mul_i32 s{s_t3}, s{s_t0}, {512*7168}')
    k(f's_lshl_b32 s{s_xo}, s{s_t1}, 7')
    k(f's_add_u32 s{s_xo}, s{s_xo}, s{s_t3}')
    k(f's_mul_i32 s{s_wo}, s{s_t0}, {3584*4}')
    k(f's_lshl_b32 s{s_t3}, s{s_t1}, 8')
    k(f's_add_u32 s{s_wo}, s{s_wo}, s{s_t3}')
    k(f's_add_u32 s{s_wo}, s{s_wo}, {WS_CS3}')
    k('v_mul_u32_u24 v11, 7168, v3')
    k('v_lshl_add_u32 v11, v2, 4, v11')
    k('s_waitcnt lgkmcnt(0)')
    KR=16; VR=44; SR=60; WR=76
    krows=[(7,0),(7,2048),(8,0),(6,0),(6,2048),(9,0),(9,2048)]
    for i,(v,o) in enumerate(krows): k(f'buffer_load_dwordx4 v[{KR+4*i}:{KR+4*i+3}], v{v}, s[{S_X}:{S_X+3}], 0 offen offset:{o}')
    for i,(v,o) in enumerate(krows[3:]): k(f'buffer_load_dwordx4 v[{VR+4*i}:{VR+4*i+3}], v{v}, s[{S_W}:{S_W+3}], 0 offen offset:{o}')
    for i in range(4): k(f'buffer_load_dwordx4 v[{SR+4*i}:{SR+4*i+3}], v10, s[{S_A}:{S_A+3}], s{s_t2} offen offset:{16*i}')
    k('s_cmp_ge_u32 s29, 112')
    k('s_cbranch_scc1 k1_now3')
    for i in range(8):
        k(f'buffer_load_dwordx4 v[{WR+4*i}:{WR+4*i+3}], v11, s[{S_B}:{S_B+3}], s{s_xo} offen')
        if i<7: k(f's_add_u32 s{s_xo}, s{s_xo}, {64*7168}')
    k('s_waitcnt vmcnt(8)')
    k('s_branch k1_kv')
    k.label('k1_now3')
    k('s_cmp_lg_u32 s29, 112')
    k('s_cbranch_scc1 k1_kv0')
    k('v_cmp_gt_u32 vcc, 24, v3')
    k('s_and_saveexec_b64 s[50:51], vcc')
    k('s_cbranch_execz k1_zdone')
    k('v_subrev_u32 v12, 8, v3')
    k('v_lshrrev_b32 v13, 1, v12')
    k('v_add_u32 v13, 8, v13')
    k('v_and_b32 v12, 1, v12')
    k('v_cmp_gt_u32 vcc, 8, v3')
    k('v_cndmask_b32 v13, v13, v3, vcc')
    k('v_cndmask_b32 v12, v12, 0, vcc') if False else k('v_mov_b32 v14, 0')
    k('v_cndmask_b32 v12, v12, v14, vcc')
    k('v_bfe_u32 v14, v13, 2, 1')
    k('v_sub_u32 v15, 2047, v12')
    k('v_cmp_eq_u32 vcc, 1, v14')
    k('v_cndmask_b32 v12, v12, v15, vcc')
    k('v_add_u32 v12, 8, v12')
    k(f's_mov_b32 s{s_t0}, {PANEL_H}')
    k(f'v_mul_lo_u32 v13, v13, s{s_t0}')
    k('v_lshl_add_u32 v13, v12, 7, v13')
    k('v_lshl_add_u32 v13, v2, 4, v13')
    for i in range(4): k(f'v_mov_b32 v{WR+i}, 0')
    k(f's_mov_b32 s{s_t0}, {WS_H}')
    k(f'buffer_store_dwordx4 v[{WR}:{WR+3}], v13, s[{S_WS}:{S_WS+3}], s{s_t0} offen {ST}')
    k.label('k1_zdone')
    k('s_mov_b64 exec, s[50:51]')
    k.label('k1_kv0')
    k('s_waitcnt vmcnt(0)')
    k.label('k1_kv')
    KU=108; SU=136; VU=152; AC=156; OUT=160
    def unp(dst,src):
        k(f'v_lshlrev_b32 v{dst}, 16, v{src}')
        k(f'v_and_b32 v{dst+1}, 0xffff0000, v{src}')
    for half in range(2):
        for r in range(7):
            for d in range(2): unp(KU+4*r+2*d, KR+4*r+2*half+d)
        for e in range(4):
            ch=4*half+e
            k(f'v_lshlrev_b32 v{SU+0+e}, 16, v{SR+2*ch}')
            k(f'v_and_b32 v{SU+4+e}, 0xffff0000, v{SR+2*ch}')
            k(f'v_lshlrev_b32 v{SU+8+e}, 16, v{SR+2*ch+1}')
            k(f'v_and_b32 v{SU+12+e}, 0xffff0000, v{SR+2*ch+1}')
        for rho in range(4):
            for d in range(2): unp(VU+2*d, VR+4*rho+2*half+d)
            for j in (3,2,1,0):
                for h in (0,2):
                    kk=KU+4*(rho+3-j)+h; ss=SU+4*j+h
                    if j==3: k(f'v_pk_mul_f32 v[{AC+h}:{AC+h+1}], v[{kk}:{kk+1}], v[{ss}:{ss+1}]')
                    else: k(f'v_pk_fma_f32 v[{AC+h}:{AC+h+1}], v[{kk}:{kk+1}], v[{ss}:{ss+1}], v[{AC+h}:{AC+h+1}]')
            for h in (0,2): k(f'v_pk_mul_f32 v[{AC+h}:{AC+h+1}], v[{AC+h}:{AC+h+1}], v[{VU+h}:{VU+h+1}]')
            for d in range(2): k(f'v_cvt_pk_bf16_f32 v{OUT+4*rho+2*half+d}, v{AC+2*d}, v{AC+2*d+1}')
    k('v_lshlrev_b32 v4, 4, v0')
    for rho in range(4): k(f'ds_write_b128 v4, v[{OUT+4*rho}:{OUT+4*rho+3}] offset:{rho*8192}')
    k('s_cmp_ge_u32 s29, 112')
    k('s_cbranch_scc1 k1_nocs')
    k('s_mov_b32 s45, 0x00003f80'); k('s_mov_b32 s46, 0x3f800000')
    for i in range(8): k(f'v_mov_b32 v{KU+i}, 0')
    k('s_waitcnt vmcnt(0)')
    for i in range(8):
        for d in range(4):
            k(f'v_dot2c_f32_bf16 v{KU+2*d}, s45, v{WR+4*i+d}')
            k(f'v_dot2c_f32_bf16 v{KU+2*d+1}, s46, v{WR+4*i+d}')
    reduce8_to2(k,KU)
    for i in range(2): k(f'v_add_f32_dpp v{KU+i}, v{KU+i}, v{KU+i} row_ror:8 row_mask:0xf bank_mask:0xf')
    k('v_lshrrev_b32 v5, 4, v1')
    k('v_lshlrev_b32 v5, 3, v5')
    k('v_lshl_add_u32 v5, v2, 5, v5')
    k(f's_lshl_b32 s{s_t0}, s{s_wave}, 8')
    k(f'v_add_u32 v5, s{s_t0}, v5')
    k(f'ds_write_b64 v5, v[{KU}:{KU+1}] offset:32768')
    k.label('k1_nocs')
    k('s_waitcnt lgkmcnt(0)')
    k('s_barrier')
    k(f's_lshr_b32 s{s_t0}, s{s_wave}, 1')
    k(f's_and_b32 s{s_t1}, s{s_wave}, 1')
    k('v_lshrrev_b32 v4, 4, v1')
    k('v_bfe_u32 v5, v1, 2, 2')
    k('v_lshl_add_u32 v5, v4, 3, v5')
    k('v_and_b32 v6, 3, v1')
    k('v_lshlrev_b32 v6, 3, v6')
    k('v_lshl_add_u32 v5, v5, 7, v6')
    k(f's_lshl_b32 s{s_t2}, s{s_t0}, 13')
    k(f's_lshl_b32 s{s_t3}, s{s_t1}, 6')
    k(f's_add_u32 s{s_t2}, s{s_t2}, s{s_t3}')
    k(f'v_add_u32 v5, s{s_t2}, v5')
    for dg in range(2):
        for hq in range(2):
            for h in range(2):
                r=16+8*(2*dg+hq)//2+0
                r=16+(dg*2+hq)*4+2*h
                k(f'ds_read_b64_tr_b16 v[{r}:{r+1}], v5 offset:{dg*32+hq*32*128+h*4*128}')
    k('v_and_b32 v6, 15, v1')
    k('v_lshlrev_b32 v6, 12, v6')
    k('v_lshl_add_u32 v6, v4, 4, v6')
    k(f's_lshl_b32 s{s_t2}, s{s_cb}, 18')
    k(f's_lshl_b32 s{s_t3}, s{s_t1}, 17')
    k(f's_add_u32 s{s_t2}, s{s_t2}, s{s_t3}')
    k(f's_lshl_b32 s{s_t3}, s{s_t0}, 10')
    k(f's_add_u32 s{s_t2}, s{s_t2}, s{s_t3}')
    k(f's_lshl_b32 s{s_t3}, s{s_rb}, 7')
    k(f's_add_u32 s{s_t2}, s{s_t2}, s{s_t3}')
    k(f's_add_u32 s{s_t2}, s{s_t2}, {WS_KVT}')
    k(f's_add_u32 s{s_t3}, s{s_t2}, 65536')
    k('s_waitcnt lgkmcnt(0)')
    for dg in range(2):
        for hq in range(2):
            r=16+(dg*2+hq)*4
            k(f'buffer_store_dwordx4 v[{r}:{r+3}], v6, s[{S_WS}:{S_WS+3}], s{s_t3 if dg else s_t2} offen offset:{hq*64} {ST}')
    k('s_cmp_ge_u32 s29, 112')
    k('s_cbranch_scc1 k1_pend')
    k(f's_cmp_lg_u32 s{s_wave}, 0')
    k('s_cbranch_scc1 k1_pend')
    k('v_lshlrev_b32 v4, 2, v1')
    for i in range(8): k(f'ds_read_b32 v{40+i}, v4 offset:{32768+i*256}')
    k('s_waitcnt lgkmcnt(0)')
    for i in range(1,8): k(f'v_add_f32 v40, v40, v{40+i}')
    k(f'buffer_store_dword v40, v4, s[{S_WS}:{S_WS+3}], s{s_wo} offen {ST}')
    k.label('k1_pend')
    if STAMPS:
        k('s_mov_b64 s[62:63], s[60:61]'); k('s_mov_b64 s[64:65], s[60:61]')
        stamp_out(k,0)
    return finish(k)

def unp(k,dst,src):
    k(f'v_lshlrev_b32 v{dst}, 16, v{src}')
    k(f'v_and_b32 v{dst+1}, 0xffff0000, v{src}')

def cprime(k,dst,tmp):
    k(f'v_lshrrev_b32 v{dst}, 4, v1')
    k(f'v_and_b32 v{tmp}, 1, v{dst}')
    k(f'v_lshrrev_b32 v{dst}, 1, v{dst}')
    k(f'v_lshl_or_b32 v{dst}, v{tmp}, 1, v{dst}')

def gen_k2():
    c=mkcfg(128,1024,4,2048,'panel',PANEL_H)
    k=Kernel('k2_kernel',256,512,c.ring,vgpr=192,agpr=64)
    entry(k)
    k('s_cmp_ge_u32 s29, 16')
    k('s_cbranch_scc1 k2_conv')
    srd(k,S_X,'q',2048*2048)
    srd(k,S_W,'w2',1024*2048)
    tile_map(k,8,4,4)
    k(f's_lshl_b32 s{s_xo}, s{s_rb}, 14')
    k(f's_add_u32 s{s_xo}, s{s_xo}, {WS_H+8*128}')
    k(f's_lshl_b32 s{s_wo}, s{s_cb}, 8')
    k(f's_cmp_ge_u32 s{s_wave}, 4')
    k('s_cbranch_scc1 k2_loader')
    c.vxa=6; c.vxa2=8; c.vwa=10; c.vwa2=14; c.acc=32; c.fx=(0,32); c.fw=(16,48)
    k(f's_lshr_b32 s{s_wm}, s{s_wave}, 1')
    k(f's_and_b32 s{s_wn}, s{s_wave}, 1')
    k('v_and_b32 v2, 15, v1')
    cprime(k,3,4)
    k('v_lshlrev_b32 v4, 11, v2')
    k('v_lshl_add_u32 v18, v3, 4, v4')
    k('v_lshlrev_b32 v19, 3, v2')
    k(f's_lshl_b32 s{s_t0}, s{s_rb}, 1')
    k(f's_add_u32 s{s_t0}, s{s_t0}, s{s_wm}')
    k(f's_lshl_b32 s{s_t1}, s{s_cb}, 1')
    k(f's_add_u32 s{s_t1}, s{s_t1}, s{s_wn}')
    k(f's_lshl_b32 s50, s{s_t0}, 17')
    k(f's_lshl_b32 s51, s{s_t1}, 7')
    k('s_add_u32 s50, s50, s51')
    k(f's_lshl_b32 s51, s{s_t0}, 9')
    k(f's_add_u32 s52, s51, {WS_ST1}')
    k(f's_lshl_b32 s53, s{s_t1}, 14')
    k('s_add_u32 s53, s53, s51')
    k(f's_add_u32 s53, s53, {WS_ST3}')
    k(f's_lshl_b32 s54, s{s_t1}, 18')
    k(f's_lshl_b32 s51, s{s_t0}, 13')
    k('s_add_u32 s54, s54, s51')
    k(f's_add_u32 s54, s54, {WS_X1}')
    k('v_and_b32 v4, 7, v2')
    k('v_xor_b32 v3, v3, v4')
    k('v_lshlrev_b32 v3, 4, v3')
    k('v_lshl_add_u32 v28, v2, 7, v3')
    k('v_xor_b32 v29, 64, v28')
    k('s_waitcnt lgkmcnt(0)')
    RAW=96
    for mt in range(4): k(f'buffer_load_dwordx2 v[{20+2*mt}:{21+2*mt}], v19, s[{S_WS}:{S_WS+3}], s52 offen offset:{mt*128}')
    for mt in range(4):
        for tp in range(2):
            r=RAW+4*(2*mt+tp)
            k(f'buffer_load_dwordx4 v[{r}:{r+3}], v18, s[{S_X}:{S_X+3}], s50 offen offset:{tp*64}')
        if mt<3: k('s_add_u32 s50, s50, 32768')
    compute_setup(k,c)
    k('s_waitcnt vmcnt(8)')
    for mt in range(4):
        k(f'v_mul_f32 v{20+2*mt}, v{20+2*mt}, v{21+2*mt}')
        k(f'v_sub_f32 v{20+2*mt}, 0, v{20+2*mt}')
    for mt in range(4):
        k(f's_waitcnt vmcnt({6-2*mt})')
        for tp in range(2):
            r=RAW+4*(2*mt+tp)
            k(f'v_permlane16_swap_b32 v{r}, v{r+2}')
            k(f'v_permlane16_swap_b32 v{r+1}, v{r+3}')
        for tp in range(2):
            r=RAW+4*(2*mt+tp); a=c.acc+4*(mt*4+2*tp); rs=20+2*mt
            for d in range(4): unp(k,a+2*d,r+d)
            for d in range(4): k(f'v_pk_fma_f32 v[{a+2*d}:{a+2*d+1}], v[{a+2*d}:{a+2*d+1}], v[{rs}:{rs+1}], v[{rs}:{rs+1}] op_sel:[0,1,0] op_sel_hi:[1,1,0]')
            for d in range(4): k(f'v_cvt_pk_bf16_f32 v{r+d}, v{a+2*d}, v{a+2*d+1}')
            for d in range(4): unp(k,a+2*d,r+d)
    compute_main(k,c)
    k('s_mov_b32 s44, 0x3f803f80')
    for i in range(8): k(f'v_mov_b32 v{20+i}, 0')
    n=0
    for mt in range(4):
        for tp in range(2):
            a=c.acc+4*(mt*4+2*tp); o=RAW+4*n; n+=1
            for d in range(4): k(f'v_cvt_pk_bf16_f32 v{o+d}, v{a+2*d}, v{a+2*d+1}')
            k(f's_add_u32 s{s_t1}, s54, {mt*2048}')
            k(f'v_permlane16_swap_b32 v{o}, v{o+2}')
            k(f'v_permlane16_swap_b32 v{o+1}, v{o+3}')
            k(f'buffer_store_dwordx4 v[{o}:{o+3}], v{28+tp}, s[{S_WS}:{S_WS+3}], s{s_t1} offen {ST}')
            for d in range(4):
                k(f'v_dot2c_f32_bf16 v{20+2*mt}, s44, v{o+d}')
                k(f'v_dot2c_f32_bf16 v{21+2*mt}, v{o+d}, v{o+d}')
    reduce8_to2(k,20)
    k('v_lshlrev_b32 v2, 3, v1')
    k(f'buffer_store_dwordx2 v[20:21], v2, s[{S_WS}:{S_WS+3}], s53 offen {ST}')
    stamp_out(k,1)
    k('s_endpgm')
    k.label('k2_loader')
    loader_setup(k,c)
    k('s_waitcnt lgkmcnt(0)')
    loader_main(k,c)
    k('s_endpgm')
    k.label('k2_conv')
    srd(k,S_X,'ssmk',1024*4096)
    k(f's_load_dwordx2 s[16:17], s[0:1], {KA["ssmD"]}')
    k('s_sub_u32 s29, s29, 16')
    k('s_lshl_b32 s29, s29, 3')
    k('s_add_u32 s29, s29, s28')
    k('s_lshl_b32 s29, s29, 3')
    k(f's_add_u32 s29, s29, s{s_wave}')
    WBS=8832; UO=4224
    k(f's_mul_i32 s50, s{s_wave}, {WBS}')
    k('s_lshl_b32 s51, s29, 12')
    k(f's_add_u32 s52, s51, {WS_KVT}')
    k(f's_add_u32 s53, s51, {WS_Y2T}')
    k('s_lshr_b32 s54, s29, 1')
    k('s_lshl_b32 s54, s54, 2')
    k('v_lshlrev_b32 v2, 4, v1')
    k('s_waitcnt lgkmcnt(0)')
    k('s_load_dword s55, s[16:17], s54')
    k('s_add_u32 m0, s50, 32')
    for i in range(4): k(f'buffer_load_dwordx4 v2, s[{S_X}:{S_X+3}], s51 offen offset:{i*1024} lds')
    for r in range(4):
        k(f's_add_u32 m0, s50, {UO+128+r*128}')
        k(f'buffer_load_dwordx4 v2, s[{S_WS}:{S_WS+3}], s52 offen offset:{r*1024} lds')
    k('v_lshrrev_b32 v3, 3, v1')
    k('v_mul_u32_u24 v3, 1152, v3')
    k('v_and_b32 v4, 7, v1')
    k('v_lshl_add_u32 v3, v4, 4, v3')
    k(f'v_add_u32 v3, {UO}, v3')
    k('v_and_b32 v4, 1, v1')
    k('v_lshlrev_b32 v4, 4, v4')
    k('v_cmp_gt_u32 vcc, 32, v1')
    k('v_cndmask_b32 v3, v4, v3, vcc')
    k('v_add_u32 v3, s50, v3')
    for i in range(32): k(f'v_mov_b32 v{32+i}, 0')
    k('ds_write_b128 v3, v[32:35]')
    k('v_lshrrev_b32 v3, 4, v1')
    k('v_bfe_u32 v4, v1, 2, 2')
    k('v_and_b32 v5, 3, v1')
    k('v_lshlrev_b32 v6, 6, v3')
    k('v_lshl_add_u32 v6, v4, 3, v6')
    k('v_lshlrev_b32 v5, 3, v5')
    k('v_sub_u32 v6, v5, v6')
    k('v_add_u32 v6, 224, v6')
    k('v_add_u32 v6, s50, v6')
    k('v_and_b32 v4, 15, v1')
    k('v_lshlrev_b32 v7, 3, v4')
    k('v_lshl_add_u32 v7, v3, 4, v7')
    k(f'v_add_u32 v7, {UO+128-120}, v7')
    k('v_add_u32 v7, s50, v7')
    k('v_lshlrev_b32 v8, 3, v4')
    k('v_lshl_add_u32 v8, v3, 1, v8')
    k(f'v_add_u32 v8, {UO+128}, v8')
    k('v_add_u32 v8, s50, v8')
    k('v_subrev_u32 v9, 16, v1')
    k('v_add_u32 v10, 47, v1')
    k('v_cmp_gt_u32 vcc, 16, v1')
    k('v_cndmask_b32 v9, v9, v10, vcc')
    k('v_mov_b32 v10, 63')
    k('v_cmp_eq_u32 vcc, 0, v1')
    k('v_cndmask_b32 v9, v9, v10, vcc')
    k('v_lshlrev_b32 v9, 2, v9')
    k('v_and_b32 v5, 1, v3')
    k('v_lshlrev_b32 v10, 9, v5')
    k('v_lshl_add_u32 v10, v4, 5, v10')
    k('v_lshrrev_b32 v5, 1, v3')
    k('v_lshl_add_u32 v10, v5, 4, v10')
    k('v_cmp_eq_u32 s[56:57], 63, v1')
    k('s_waitcnt vmcnt(0) lgkmcnt(0)')
    if STAMPS: k('s_memtime s[62:63]'); k('s_waitcnt lgkmcnt(0)')
    k('s_bitcmp1_b32 s29, 0')
    k('s_cselect_b32 s54, 0, 16')
    k('s_lshl_b32 s55, s55, s54')
    k('s_and_b32 s55, s55, 0xffff0000')
    lq=LQ(k)
    ACC=64
    Z=lambda rho,T: ACC+4*(rho*8+T)
    items=[]
    for i in range(8):
        for rho in range(4):
            items.append((-1+i,rho)); items.append((14-i,rho))
    NB=4; BB=16
    def bread(n):
        e,rho=items[n]; r=BB+4*(n%NB); o=rho*1152+64*(e+1)
        lq.issue(f'ds_read_b64 v[{r}:{r+1}], v7 offset:{o}',('b',n))
        lq.issue(f'ds_read_b64 v[{r+2}:{r+3}], v7 offset:{o+8}',('b',n))
    def aread(jj):
        for h in range(2):
            lq.issue(f'ds_read_b64_tr_b16 a[{4*jj+2*h}:{4*jj+2*h+1}], v6 offset:{256*jj+32*(1-h)}',('a',jj))
    bread(0)
    for jj in (1,3,5,7,9,11,13,15,0): aread(jj)
    bread(1); bread(2)
    pend_a=[2,4,6,8,10,12,14]
    for n,(e,rho) in enumerate(items):
        r=BB+4*(n%NB)
        first=True
        for T in range(8):
            jj=2*T-e
            if jj<0 or jj>15: continue
            lq.need([('b',n),('a',jj)])
            z=Z(rho,T)
            k(f'v_mfma_f32_16x16x32_bf16 v[{z}:{z+3}], a[{4*jj}:{4*jj+3}], v[{r}:{r+3}], {"0" if e==-1 else f"v[{z}:{z+3}]"}')
            if first:
                first=False
                if n+3<len(items): bread(n+3)
            elif pend_a and n>=0: aread(pend_a.pop(0))
    if STAMPS: k('s_memtime s[64:65]'); k('s_waitcnt lgkmcnt(0)')
    lq.drain()
    for T in range(8):
        for r in range(4): k(f'ds_read_u16_d16_hi v{32+4*T+r}, v8 offset:{r*1152+T*128}')
    for T in range(8):
        z0,z1,z2,z3=[Z(r,T) for r in range(4)]
        k(f'v_add_f32 v{z1+3}, v{z1+3}, v{z2+2}')
        k(f'v_add_f32 v{z1+3}, v{z1+3}, v{z3+1}')
        k(f'v_add_f32 v{z2+3}, v{z2+3}, v{z3+2}')
    k('v_mov_b32 v11, 0')
    for T in range(7,-1,-1):
        for rho in (1,2,3):
            prev=f'v{Z(rho,T-1)+3}' if T else 'v11'
            k(f'v_cndmask_b32 v{Z(rho,T)+3}, v{Z(rho,T)+3}, {prev}, s[56:57]')
    for T in range(8):
        for rho in (1,2,3): k(f'ds_bpermute_b32 v{Z(rho,T)+3}, v9, v{Z(rho,T)+3}')
    for T in range(8):
        z0,z1,z2,z3=[Z(r,T) for r in range(4)]
        k(f'v_add_f32 v{z0+1}, v{z0+1}, v{z1}')
        k(f'v_add_f32 v{z0+2}, v{z0+2}, v{z1+1}')
        k(f'v_add_f32 v{z0+3}, v{z0+3}, v{z1+2}')
        k(f'v_add_f32 v{z0+2}, v{z0+2}, v{z2}')
        k(f'v_add_f32 v{z0+3}, v{z0+3}, v{z2+1}')
        k(f'v_add_f32 v{z0+3}, v{z0+3}, v{z3}')
    k('s_waitcnt lgkmcnt(0)')
    for T in range(8):
        z0=Z(0,T)
        for r in range(4): k(f'v_fmac_f32 v{z0+r}, s55, v{32+4*T+r}')
        for r in range(3): k(f'v_add_f32 v{z0+r}, v{z0+r}, v{Z(r+1,T)+3}')
    for T in range(0,8,2):
        o=16+4*(T//2); a=Z(0,T); b=Z(0,T+1)
        k(f'v_cvt_pk_bf16_f32 v{o}, v{a}, v{a+1}')
        k(f'v_cvt_pk_bf16_f32 v{o+1}, v{a+2}, v{a+3}')
        k(f'v_cvt_pk_bf16_f32 v{o+2}, v{b}, v{b+1}')
        k(f'v_cvt_pk_bf16_f32 v{o+3}, v{b+2}, v{b+3}')
        k(f'v_permlane16_swap_b32 v{o}, v{o+2}')
        k(f'v_permlane16_swap_b32 v{o+1}, v{o+3}')
        k(f'buffer_store_dwordx4 v[{o}:{o+3}], v10, s[{S_WS}:{S_WS+3}], s53 offen offset:{T*512} {ST}')
    stamp_out(k,1)
    return finish(k)

G3MAP=(4,8)
def gen_k3():
    c=mkcfg(224,1024,3,7168,'panel',PANEL)
    LDS_RS=c.ring; LDS_CS=c.ring+1024
    k=Kernel('k3_kernel',256,512,c.ring+2048,vgpr=168,agpr=88)
    entry(k)
    srd(k,S_W,'w3',1024*7168)
    tile_map(k,16,*G3MAP)
    k(f's_lshl_b32 s{s_xo}, s{s_rb}, 14')
    k(f's_add_u32 s{s_xo}, s{s_xo}, {WS_X1}')
    k(f's_mul_i32 s{s_wo}, s{s_cb}, 448')
    k(f's_cmp_ge_u32 s{s_wave}, 4')
    k('s_cbranch_scc1 k3_loader')
    c.vxa=6; c.vxa2=8; c.vwa=10; c.vwa2=12; c.acc=32; c.fx=(0,44); c.fw=(16,60)
    compute_setup(k,c)
    for i in range(112): k(f'v_mov_b32 v{c.acc+i}, 0')
    k('v_and_b32 v2, 15, v1')
    cprime(k,3,4)
    k(f's_lshl_b32 s{s_t0}, s{s_cb}, 1')
    k(f's_add_u32 s{s_t0}, s{s_t0}, s{s_wn}')
    k(f's_mul_i32 s{s_t0}, s{s_t0}, 14')
    k('v_and_b32 v5, 7, v2')
    for tp in range(4):
        if tp<3:
            k(f's_add_u32 s{s_t1}, s{s_t0}, {4*tp}')
            k(f'v_add_u32 v18, s{s_t1}, v3')
        else:
            k(f's_add_u32 s{s_t1}, s{s_t0}, 12')
            k('v_lshrrev_b32 v18, 5, v1')
            k(f'v_add_u32 v18, s{s_t1}, v18')
        k('v_and_b32 v19, 7, v18')
        k('v_xor_b32 v19, v19, v5')
        k('v_lshlrev_b32 v19, 4, v19')
        k('v_lshrrev_b32 v18, 3, v18')
        k('v_lshl_add_u32 v19, v18, 18, v19')
        k(f'v_lshl_add_u32 v{28+tp}, v2, 7, v19')
    k('v_bfe_u32 v18, v1, 4, 1')
    k('v_lshl_add_u32 v31, v18, 11, v31')
    k(f's_lshl_b32 s{s_t2}, s{s_rb}, 14')
    k(f's_lshl_b32 s{s_t0}, s{s_wm}, 13')
    k(f's_add_u32 s{s_t2}, s{s_t2}, s{s_t0}')
    k(f's_add_u32 s{s_t2}, s{s_t2}, {WS_H3}')
    k('s_waitcnt lgkmcnt(0)')
    compute_main(k,c)
    ln_gelu_epilogue(k,c,LDS_RS,LDS_CS,1,[28,29,30,31],144,[160,164,6,10,14,32,36],20,s_t2,late=(5,6))
    stamp_out(k,2)
    k('s_endpgm')
    k.label('k3_loader')
    loader_setup(k,c)
    k('v_and_b32 v2, 31, v1')
    k('v_lshrrev_b32 v3, 5, v1')
    k('v_lshlrev_b32 v20, 3, v2')
    k('v_lshl_add_u32 v21, v3, 17, v20')
    k(f's_lshl_b32 s50, s{s_rb}, 10')
    k(f's_lshl_b32 s51, s{s_lw}, 8')
    k('s_add_u32 s50, s50, s51')
    k(f's_add_u32 s50, s50, {WS_ST3}')
    k(f'v_add_u32 v20, s51, v20')
    k(f'v_add_u32 v20, {LDS_RS}, v20')
    k('v_lshlrev_b32 v22, 2, v1')
    k(f's_mul_i32 s51, s{s_lw}, 224')
    k(f's_mul_i32 s52, s{s_cb}, 896')
    k('s_add_u32 s52, s52, s51')
    k(f's_add_u32 s52, s52, {WS_CS3}')
    k(f's_add_u32 s53, s52, {3584*4}')
    k(f's_add_u32 s51, s51, {LDS_CS}')
    k('v_add_u32 v23, s51, v22')
    def tail(s):
        if s==c.S-c.R:
            for p in range(8):
                k(f'buffer_load_dwordx2 v[{32+2*p}:{33+2*p}], v21, s[{S_WS}:{S_WS+3}], s50 offen')
                if p<7: k('s_add_u32 s50, s50, 16384')
            k(f'buffer_load_dword v48, v22, s[{S_WS}:{S_WS+3}], s52 offen')
            k(f'buffer_load_dword v49, v22, s[{S_WS}:{S_WS+3}], s53 offen')
            return 10
        if s==c.S-2:
            k('s_waitcnt vmcnt(0)')
            for p in range(1,8): k(f'v_pk_add_f32 v[32:33], v[32:33], v[{32+2*p}:{33+2*p}]')
            k('v_mov_b32 v34, v32'); k('v_mov_b32 v35, v33')
            k('v_permlane32_swap_b32 v32, v34')
            k('v_permlane32_swap_b32 v33, v35')
            k('v_pk_add_f32 v[32:33], v[32:33], v[34:35]')
            ln_finish(k,32,33,34,36,38)
            k('v_mul_f32 v39, v36, v38')
            k('v_sub_f32 v39, 0, v39')
            k('ds_write_b64 v20, v[38:39]')
            k('v_add_f32 v48, v48, v49')
            k('ds_write_b32 v23, v48')
        return 0
    c.tail=tail
    k('s_waitcnt lgkmcnt(0)')
    loader_main(k,c)
    return finish(k)

def gen_k4():
    c=mkcfg(64,3584,5,2048,'panel',PANEL)
    LDS_Y=c.ring
    k=Kernel('k4_kernel',256,512,c.ring+16384,vgpr=192,agpr=48)
    entry(k)
    srd(k,S_W,'w4',3584*2048)
    srd(k,S_X,'q',2048*2048)
    srd(k,S_A,'out',2048*2048)
    tile_map(k,16,4,8)
    k(f's_lshl_b32 s{s_xo}, s{s_rb}, 14')
    k(f's_add_u32 s{s_xo}, s{s_xo}, {WS_H3}')
    k(f's_lshl_b32 s{s_wo}, s{s_cb}, 7')
    k(f's_cmp_ge_u32 s{s_wave}, 4')
    k('s_cbranch_scc1 k4_loader')
    c.vxa=6; c.vxa2=8; c.vwa=10; c.vwa2=12; c.acc=32; c.fx=(0,24); c.fw=(16,40)
    k(f's_lshr_b32 s{s_wm}, s{s_wave}, 1')
    k(f's_and_b32 s{s_wn}, s{s_wave}, 1')
    k('v_and_b32 v2, 15, v1')
    cprime(k,3,4)
    k('v_lshlrev_b32 v4, 11, v2')
    k('v_lshl_add_u32 v18, v3, 4, v4')
    k('v_lshlrev_b32 v19, 3, v2')
    k(f's_lshl_b32 s{s_t0}, s{s_rb}, 1')
    k(f's_add_u32 s{s_t0}, s{s_t0}, s{s_wm}')
    k(f's_lshl_b32 s50, s{s_t0}, 17')
    k(f's_lshl_b32 s51, s{s_cb}, 7')
    k('s_add_u32 s50, s50, s51')
    k(f's_lshl_b32 s51, s{s_wn}, 6')
    k('s_add_u32 s50, s50, s51')
    k(f's_lshl_b32 s51, s{s_t0}, 9')
    k(f's_add_u32 s52, s51, {WS_ST1}')
    k(f's_lshl_b32 s54, s{s_cb}, 18')
    k(f's_lshl_b32 s51, s{s_t0}, 13')
    k('s_add_u32 s54, s54, s51')
    k(f's_add_u32 s54, s54, {WS_X1}')
    k(f's_lshl_b32 s51, s{s_wn}, 2')
    k('v_add_u32 v3, s51, v3')
    k('v_and_b32 v4, 7, v2')
    k('v_xor_b32 v3, v3, v4')
    k('v_lshlrev_b32 v3, 4, v3')
    k('v_lshl_add_u32 v28, v2, 7, v3')
    k('v_lshrrev_b32 v3, 3, v1')
    k('v_and_b32 v4, 7, v1')
    k('v_lshlrev_b32 v4, 4, v4')
    k('v_lshl_add_u32 v29, v3, 12, v4')
    k(f's_lshl_b32 s55, s{s_cb}, 18')
    k(f's_lshl_b32 s51, s{s_wn}, 17')
    k('s_add_u32 s55, s55, s51')
    k(f's_lshl_b32 s51, s{s_t0}, 7')
    k('s_add_u32 s55, s55, s51')
    k(f's_add_u32 s55, s55, {WS_Y2T}')
    k(f's_lshl_b32 s56, s{s_wave}, 12')
    k(f's_add_u32 s56, s56, {LDS_Y}')
    k('s_waitcnt lgkmcnt(0)')
    R1=64; RX=80; XF=96; PF=128; YR=160
    for mt in range(4):
        k(f's_add_u32 s51, s54, {mt*2048}')
        k(f'buffer_load_dwordx4 v[{R1+4*mt}:{R1+4*mt+3}], v28, s[{S_WS}:{S_WS+3}], s51 offen')
    for mt in range(4): k(f'buffer_load_dwordx2 v[{20+2*mt}:{21+2*mt}], v19, s[{S_WS}:{S_WS+3}], s52 offen offset:{mt*128}')
    for mt in range(4):
        k(f's_add_u32 s51, s50, {mt*32768}')
        k(f'buffer_load_dwordx4 v[{RX+4*mt}:{RX+4*mt+3}], v18, s[{S_X}:{S_X+3}], s51 offen')
    for i in range(4):
        k(f's_add_u32 m0, s56, {i*1024}')
        k(f'buffer_load_dwordx4 v29, s[{S_WS}:{S_WS+3}], s55 offen lds')
        if i<3: k('s_add_u32 s55, s55, 32768')
    compute_setup(k,c)
    k('v_lshrrev_b32 v3, 2, v1')
    k('v_and_b32 v4, 3, v1')
    k('v_lshlrev_b32 v4, 3, v4')
    k('v_lshl_add_u32 v3, v3, 7, v4')
    k('v_add_u32 v30, s56, v3')
    k('s_waitcnt vmcnt(12)')
    for mt in range(4):
        r=R1+4*mt
        k(f'v_permlane16_swap_b32 v{r}, v{r+2}')
        k(f'v_permlane16_swap_b32 v{r+1}, v{r+3}')
    for mt in range(4):
        for d in range(4): unp(k,c.acc+8*mt+2*d,R1+4*mt+d)
    k('s_waitcnt vmcnt(4)')
    for mt in range(4):
        r=RX+4*mt
        k(f'v_permlane16_swap_b32 v{r}, v{r+2}')
        k(f'v_permlane16_swap_b32 v{r+1}, v{r+3}')
        k(f'v_mul_f32 v{20+2*mt}, v{20+2*mt}, v{21+2*mt}')
        k(f'v_sub_f32 v{20+2*mt}, 0, v{20+2*mt}')
    for mt in range(4):
        rs=20+2*mt
        for d in range(4): unp(k,XF+8*mt+2*d,RX+4*mt+d)
        for d in range(4):
            x=XF+8*mt+2*d; p=PF+8*mt+2*d
            k(f'v_pk_fma_f32 v[{p}:{p+1}], v[{x}:{x+1}], v[{rs}:{rs+1}], v[{rs}:{rs+1}] op_sel:[0,1,0] op_sel_hi:[1,1,0]')
    k('s_waitcnt vmcnt(0)')
    for mt in range(4):
        for t in range(2):
            r=YR+4*mt+2*t
            k(f'ds_read_b64_tr_b16 v[{r}:{r+1}], v30 offset:{t*2048+mt*32}')
    k('s_waitcnt lgkmcnt(0)')
    for mt in range(4):
        for d in range(4):
            unp(k,R1+2*d,YR+4*mt+d)
        for d in range(4):
            p=PF+8*mt+2*d
            k(f'v_pk_mul_f32 v[{p}:{p+1}], v[{p}:{p+1}], v[{R1+2*d}:{R1+2*d+1}]')
    compute_main(k,c)
    k(f's_mov_b32 s44, {f2u(-LOG2E):#x}'); k(f's_mov_b32 s45, {f2u(-LOG2E):#x}')
    k('s_mov_b32 s48, 1.0'); k('s_mov_b32 s49, 1.0')
    for mt in range(4):
        a=c.acc+8*mt; t=R1+8*(mt%2); o=RX+4*mt
        for d in range(4): k(f'v_pk_mul_f32 v[{t+2*d}:{t+2*d+1}], v[{a+2*d}:{a+2*d+1}], s[44:45]')
        for d in range(8): k(f'v_exp_f32 v{t+d}, v{t+d}')
        for d in range(4): k(f'v_pk_add_f32 v[{t+2*d}:{t+2*d+1}], v[{t+2*d}:{t+2*d+1}], s[48:49]')
        for d in range(8): k(f'v_rcp_f32 v{t+d}, v{t+d}')
        for d in range(4): k(f'v_pk_mul_f32 v[{t+2*d}:{t+2*d+1}], v[{t+2*d}:{t+2*d+1}], v[{a+2*d}:{a+2*d+1}]')
        for d in range(4):
            x=XF+8*mt+2*d; p=PF+8*mt+2*d
            k(f'v_pk_fma_f32 v[{t+2*d}:{t+2*d+1}], v[{t+2*d}:{t+2*d+1}], v[{p}:{p+1}], v[{x}:{x+1}]')
        for d in range(4): k(f'v_cvt_pk_bf16_f32 v{o+d}, v{t+2*d}, v{t+2*d+1}')
        k(f's_add_u32 s51, s50, {mt*32768}')
        k(f'v_permlane16_swap_b32 v{o}, v{o+2}')
        k(f'v_permlane16_swap_b32 v{o+1}, v{o+3}')
        k(f'buffer_store_dwordx4 v[{o}:{o+3}], v18, s[{S_A}:{S_A+3}], s51 offen {ST}')
    stamp_out(k,3)
    k('s_endpgm')
    k.label('k4_loader')
    loader_setup(k,c)
    k('s_waitcnt lgkmcnt(0)')
    loader_main(k,c)
    return finish(k)
```

```python
import re
TRANS=('v_exp_f32','v_rcp_f32','v_rsq_f32','v_sqrt_f32','v_log_f32','v_sin_f32','v_cos_f32')
_reg=re.compile(r'^(-|abs\()?([vas])(\d+)\)?$')
_rng=re.compile(r'^(-)?([vas])\[(\d+):(\d+)\]$')
def regs(tok):
    tok=tok.strip()
    m=_reg.match(tok)
    if m: return {(m.group(2),int(m.group(3)))}
    m=_rng.match(tok)
    if m: return {(m.group(2),i) for i in range(int(m.group(3)),int(m.group(4))+1)}
    if tok in ('vcc','vcc_lo','vcc_hi'): return {('s','vcc')}
    if tok in ('exec','exec_lo','exec_hi'): return {('s','exec')}
    if tok=='m0': return {('s','m0')}
    return set()
class I: pass
def parse(line):
    t=line.split(';')[0].strip()
    if not t or t.endswith(':') or t.startswith('.'): return None
    p=t.split(None,1)
    op=p[0]; rest=p[1] if len(p)>1 else ''
    ops=[]; cur=''; depth=0
    for ch in rest:
        if ch=='[': depth+=1
        if ch==']': depth-=1
        if ch==',' and depth==0: ops.append(cur); cur=''
        else: cur+=ch
    ops.append(cur)
    if ops:
        last=ops[-1].strip().split()
        mods=' '.join(last[1:]) if last else ''
        ops[-1]=last[0] if last else ''
    else: mods=''
    i=I(); i.op=op; i.txt=t; i.mods=mods
    R=[regs(o) for o in ops]
    i.mfma=op.startswith('v_mfma')
    i.valu=op.startswith('v_') and not i.mfma
    i.trans=any(op.startswith(x) for x in TRANS)
    i.dot=op.startswith('v_dot')
    i.dpp='_dpp' in op
    i.perml=op.startswith('v_permlane')
    i.rdlane=op.startswith('v_readfirstlane') or op.startswith('v_readlane')
    i.vmem=op.startswith('buffer_') or op.startswith('global_')
    i.ds=op.startswith('ds_')
    i.salu=op.startswith('s_')
    i.ldsdma=i.vmem and (' lds' in ' '+mods or 'load_lds' in op)
    i.w=set(); i.r=set(); i.srcc=set(); i.ab=set(); i.sdata=set()
    U=lambda l: set().union(*l) if l else set()
    if i.mfma:
        i.w=R[0]; i.ab=R[1]|R[2]; i.srcc=R[3]; i.r=i.ab|i.srcc
    elif i.perml:
        i.w=R[0]|R[1]; i.r=R[0]|R[1]
    elif i.valu:
        i.w=set(R[0]); i.r=U(R[1:])
        if op.startswith(('v_add_co','v_sub_co','v_addc_co','v_subb_co')): i.w|=R[1]; i.r=U(R[2:])
        if op.startswith(('v_fmac','v_dot2c','v_pk_fmac')) or 'd16' in op: i.r|=R[0]
        if op.startswith('v_cndmask') and len(R)==3: i.r|={('s','vcc')}
        if i.dpp: i.r|=R[0]
    elif i.vmem:
        if 'store' in op or 'atomic' in op:
            i.r=U(R)
            if 'x3' in op or 'x4' in op: i.sdata=R[0] if op.startswith('buffer') else R[1]
        elif i.ldsdma: i.r=U(R)|{('s','m0')}
        else: i.w=R[0]; i.r=U(R[1:])
    elif i.ds:
        if 'write' in op or 'add' in op: i.r=U(R)
        else: i.w=R[0]; i.r=U(R[1:])
    elif i.salu:
        if op.startswith(('s_cmp','s_cbranch','s_branch','s_waitcnt','s_barrier','s_nop','s_endpgm','s_setprio','s_sleep')): i.r=U(R)
        else:
            i.w=set(R[0]) if R else set(); i.r=U(R[1:])
            if 'saveexec' in op: i.w|={('s','exec')}
    i.ws=1
    if op=='s_nop': i.ws=int(ops[0],0)+1
    return i
def isv(s): return {x for x in s if x[0] in 'va'}
def iss(s): return {x for x in s if x[0]=='s'}
def need(p,c):
    n=0
    if p.valu:
        pv=isv(p.w); ps=iss(p.w)
        if c.mfma and pv&c.r: n=max(n,2)
        if (c.perml or c.dpp) and pv&c.r: n=max(n,2)
        if c.rdlane and pv&c.r: n=max(n,1)
        if p.trans and c.valu and pv&c.r: n=max(n,1)
        if p.dot and (c.valu or c.mfma or c.vmem or c.ds):
            if c.op==p.op:
                ab=c.r-c.w if c.op.startswith('v_dot2c') else c.r
                if pv&ab and not c.op.startswith('v_dot2c'): n=max(n,3)
                if c.op.startswith('v_dot2c') and pv&(c.r-c.w): n=max(n,3)
            elif pv&(c.r|c.w): n=max(n,3)
        if ps:
            if c.valu and ps&c.r: n=max(n,4 if c.rdlane else 2)
            if c.vmem and ps&c.r: n=max(n,5)
            if c.salu and ps&c.r: n=max(n,1)
            if ('s','exec') in ps and (c.mfma or c.perml or c.rdlane): n=max(n,4)
            if ('s','exec') in ps and c.dpp: n=max(n,5)
    if p.mfma:
        big='32x32' in p.op
        d=12 if big else 8
        if (c.valu or c.vmem or c.ds) and p.w&(c.r|c.w): n=max(n,d)
        if c.mfma:
            if p.w&c.ab: n=max(n,d)
            if p.w&c.srcc and p.w!=c.srcc: n=max(n,d-2)
            if p.w&c.w and not (p.w&c.srcc): n=max(n,d)
        if c.valu and p.srcc&c.w: n=max(n,7 if big else 3)
    if p.sdata and (c.valu or c.mfma) and p.sdata&c.w: n=max(n,2)
    if p.sdata and (c.vmem or c.ds) and p.sdata&c.w: n=max(n,1)
    if p.salu and ('s','m0') in p.w and c.ldsdma: n=max(n,1)
    return n
def fix(lines):
    out=[]; hist=[]
    nins=0
    for l in lines:
        c=parse(l)
        if c is None:
            out.append(l); continue
        dist=0; req=0
        for p in reversed(hist):
            r=need(p,c)
            if r>dist: req=max(req,r-dist)
            dist+=p.ws
            if dist>=14: break
        while req>0:
            n=min(req,8)
            nop=f'  s_nop {n-1}'
            out.append(nop); hist.append(parse(nop)); req-=n; nins+=1
        out.append(l); hist.append(c)
        if len(hist)>40: hist=hist[-20:]
    return out,nins
```

```python
import sys, gen
from asmlib import *
gen.STAMPS='stamps' in sys.argv
gen.DBGT='dbgt' in sys.argv
out=sys.argv[1]
ks=[]
for n in ('k1','k2','k3','k4'):
    if hasattr(gen,'gen_'+n): ks.append(getattr(gen,'gen_'+n)())
build_file(ks,out)
```

```python
import sys, gen
from asmlib import *
def empty(name):
    k=Kernel(name,256,64,0,vgpr=32); k('s_endpgm'); return k
ks=[gen.gen_k1(),gen.gen_k2(),gen.gen_k3(),gen.gen_k4()]
e=empty('e0_kernel')
build_file(ks,'vA.s')
build_file(ks+[e]*4,'vB.s')
build_file([e]*4+ks,'vC.s')
build_file([ks[0],e,ks[1],e,ks[2],e,ks[3]],'vD.s')
build_file(ks+ks,'vE.s')
```

```python
import sys, math, struct
from asmlib import *
import hazard

KA=dict(q=0,k=8,v=16,shk=24,ssmk=32,ssmD=40,bx=48,w1=56,w2=64,w3=72,w4=80,out=88,dbg=96,ws=104)
PANEL=2048*128
PANEL_H=(2048+16)*128
WS_H  =0x0000000
WS_X1 =0x0500000
WS_H3 =0x0A00000
WS_KVT=0x1900000
WS_Y2T=0x1E00000
WS_ST1=0x2300000
WS_ST3=0x2310000
WS_CS3=0x2360000
WS_STAMP=0x8000000
WS_SIZE=0x10000000
ST='sc1'
STAMPS=False
DBGT=False

def f2u(x): return struct.unpack('<I',struct.pack('<f',x))[0]
LOG2E=1.4426950408889634
GA=-2.0*math.sqrt(2.0/math.pi)*LOG2E
GB=GA*0.044715

class G:
    def __init__(self, **kw): self.__dict__.update(kw)

S_WS=4; S_X=8; S_W=12; S_A=16; S_B=20; S_C=24
s_xo=30; s_wo=31; s_cnt=32; s_wave=33; s_rb=34; s_cb=35; s_t0=36; s_t1=37; s_t2=38; s_t3=39
s_lw=40; s_lx=41; s_lwb=42; s_wm=40; s_wn=41
s_c0=44

def srd(k, base, arg, size):
    k(f's_load_dwordx2 s[{base}:{base+1}], s[0:1], {KA[arg]}')
    k(f's_mov_b32 s{base+2}, {size}')
    k(f's_mov_b32 s{base+3}, 0x20000')

def wswz_bits(Nt): return {64:[(1,0),(3,1)], 128:[(0,0),(1,1),(3,2)], 224:[(3,0)]}[Nt]
def emit_f(k, dst, krow, tmp, Nt):
    first=True
    if Nt==128:
        k(f'v_and_b32 v{dst}, 3, v{krow}')
        k(f'v_bfe_u32 v{tmp}, v{krow}, 3, 1')
        k(f'v_lshl_or_b32 v{dst}, v{tmp}, 2, v{dst}')
        return
    for sb,db in wswz_bits(Nt):
        if first:
            k(f'v_bfe_u32 v{dst}, v{krow}, {sb}, 1'); assert db==0
            first=False
        else:
            k(f'v_bfe_u32 v{tmp}, v{krow}, {sb}, 1')
            k(f'v_lshl_or_b32 v{dst}, v{tmp}, {db}, v{dst}')

def mkcfg(Nt,K,R,wpitch,xmode,xadv):
    c=G(Nt=Nt,K=K,R=R,wpitch=wpitch,xmode=xmode,xadv=xadv)
    c.NT=Nt//32; c.S=K//64
    c.stage=16384+64*Nt*2
    c.nwb={64:2,128:4,224:2}[Nt]
    c.split={64:73728,128:65536,224:90112}[Nt]
    c.ring=R*c.stage
    c.sX=S_X if xmode=='rows' else S_WS
    c.aux=None
    c.bar_at={64:1,128:3,224:4}[Nt]
    return c

def loader_setup(k,c):
    L=1; t0,t1,t2,t3=2,3,4,5
    Nt=c.Nt; CPR=Nt//8; NWL=Nt//32
    k(f's_sub_u32 s{s_lw}, s{s_wave}, 4')
    k(f's_lshl_b32 s{s_lx}, s{s_lw}, 12')
    if c.xmode=='rows':
        k(f'v_lshrrev_b32 v{t0}, 3, v{L}')
        k(f'v_and_b32 v{t1}, 7, v{L}')
        k(f'v_xor_b32 v{t1}, v{t1}, v{t0}')
        k(f'v_lshlrev_b32 v{t1}, 4, v{t1}')
        k(f's_lshl_b32 s{s_t0}, s{s_lw}, 5')
        k(f'v_add_u32 v{t0}, s{s_t0}, v{t0}')
        k(f'v_lshl_add_u32 v6, v{t0}, 11, v{t1}')
        for i in range(1,4): k(f'v_add_u32 v{6+i}, {i*8*2048-i*1024}, v6')
    else:
        k(f'v_lshl_add_u32 v6, v{L}, 4, s{s_lx}')
    k(f's_mul_i32 s{s_t0}, s{s_lw}, {NWL*64}')
    k(f's_mov_b32 s{s_t1}, {c.wpitch}')
    for i in range(NWL):
        k(f'v_add_u32 v{t0}, s{s_t0}, v{L}')
        if i: k(f'v_add_u32 v{t0}, {i*64}, v{t0}')
        if CPR==28:
            k(f'v_mul_u32_u24 v{t1}, 2341, v{t0}')
            k(f'v_lshrrev_b32 v{t1}, 16, v{t1}')
            k(f'v_mul_u32_u24 v{t2}, 28, v{t1}')
            k(f'v_sub_u32 v{t0}, v{t0}, v{t2}')
        else:
            sh={8:3,16:4}[CPR]
            k(f'v_lshrrev_b32 v{t1}, {sh}, v{t0}')
            k(f'v_and_b32 v{t0}, {CPR-1}, v{t0}')
        emit_f(k,t2,t1,t3,Nt)
        k(f'v_lshlrev_b32 v{t2}, 1, v{t2}')
        k(f'v_xor_b32 v{t0}, v{t0}, v{t2}')
        k(f'v_mul_lo_u32 v{t1}, v{t1}, s{s_t1}')
        k(f'v_lshl_add_u32 v{10+i}, v{t0}, 4, v{t1}')
        if i%4: k(f'v_subrev_u32 v{10+i}, {(i%4)*1024}, v{10+i}')
    k(f's_mul_i32 s{s_lwb}, s{s_lw}, {NWL*1024}')
    k(f's_add_u32 s{s_lwb}, s{s_lwb}, 16384')

def loader_issue(k,c,slot):
    NWL=c.Nt//32; base=slot*c.stage
    k(f's_add_u32 m0, s{s_lx}, {base}')
    for i in range(4):
        v=6+i if c.xmode=='rows' else 6
        k(f'buffer_load_dwordx4 v{v}, s[{c.sX}:{c.sX+3}], s{s_xo} offen offset:{i*1024} lds')
    for i in range(NWL):
        if i%4==0: k(f's_add_u32 m0, s{s_lwb}, {base+i*1024}')
        k(f'buffer_load_dwordx4 v{10+i}, s[{S_W}:{S_W+3}], s{s_wo} offen offset:{(i%4)*1024} lds')
    k(f's_add_u32 s{s_xo}, s{s_xo}, {c.xadv}')
    k(f's_add_u32 s{s_wo}, s{s_wo}, {64*c.wpitch}')

def loader_main(k,c):
    S=c.S; R=c.R; per=4+c.Nt//32
    aux=c.aux or (lambda slot: None)
    loader_issue(k,c,0); loader_issue(k,c,1)
    k(f's_waitcnt vmcnt({per})')
    k('s_barrier')
    for s in range(2,R): loader_issue(k,c,s)
    aux(0)
    k(f's_waitcnt vmcnt({(R-2)*per}) lgkmcnt(0)')
    nloop=(S-R)//R
    def it(s, steady):
        k('s_barrier')
        if steady or s+R<S: loader_issue(k,c,s%R)
        if steady or s+1<S: aux((s+1)%R)
        if steady: k(f's_waitcnt vmcnt({(R-2)*per}) lgkmcnt(0)')
        else:
            extra=c.tail(s) if getattr(c,'tail',None) else 0
            last=min(s+R,S-1)
            if s+2<=S-1: k(f's_waitcnt vmcnt({(last-(s+2))*per+extra}) lgkmcnt(0)')
            else: k('s_waitcnt lgkmcnt(0)')
    k(f's_mov_b32 s{s_cnt}, {nloop}')
    Lb=k.newlabel('ld'); k('.p2align 3'); k.label(Lb)
    for s in range(R): it(s,True)
    k(f's_sub_u32 s{s_cnt}, s{s_cnt}, 1')
    k(f's_cmp_lg_u32 s{s_cnt}, 0')
    k(f's_cbranch_scc1 {Lb}')
    for s in range(nloop*R,S): it(s,False)

def compute_setup(k,c):
    L=1; t0,t1,t2,t3=2,3,4,5
    Nt=c.Nt; NT=c.NT; P=Nt*2
    k(f's_lshr_b32 s{s_wm}, s{s_wave}, 1')
    k(f's_and_b32 s{s_wn}, s{s_wave}, 1')
    k(f'v_and_b32 v{t0}, 15, v{L}')
    k(f'v_lshrrev_b32 v{t1}, 4, v{L}')
    k(f'v_and_b32 v{t2}, 7, v{L}')
    k(f'v_xor_b32 v{t2}, v{t2}, v{t1}')
    k(f'v_lshlrev_b32 v{t2}, 4, v{t2}')
    k(f'v_lshl_add_u32 v{t2}, v{t0}, 7, v{t2}')
    k(f's_lshl_b32 s{s_t0}, s{s_wm}, 13')
    k(f'v_add_u32 v{c.vxa}, s{s_t0}, v{t2}')
    k(f'v_xor_b32 v{c.vxa+1}, 64, v{c.vxa}')
    k(f'v_bfe_u32 v{t0}, v{L}, 2, 2')
    k(f'v_lshl_add_u32 v{t0}, v{t1}, 3, v{t0}')
    emit_f(k,t2,t0,t3,Nt)
    k(f'v_mul_u32_u24 v{t0}, {P}, v{t0}')
    k(f'v_and_b32 v{t1}, 3, v{L}')
    k(f'v_lshl_add_u32 v{t0}, v{t1}, 3, v{t0}')
    k(f'v_add_u32 v{t0}, 16384, v{t0}')
    k(f's_mul_i32 s{s_t0}, s{s_wn}, {NT}')
    for b in range(c.nwb):
        k(f's_add_u32 s{s_t1}, s{s_t0}, {b}')
        k(f'v_xor_b32 v{t1}, s{s_t1}, v{t2}')
        k(f'v_lshl_add_u32 v{c.vwa+b}, v{t1}, 5, v{t0}')
    for i in range(2): k(f'v_add_u32 v{c.vxa2+i}, {c.split}, v{c.vxa+i}')
    for b in range(c.nwb): k(f'v_add_u32 v{c.vwa2+b}, {c.split}, v{c.vwa+b}')

def frag_reads(c,slot,ks,fset):
    P=c.Nt*2; so=slot*c.stage
    hi=so>=c.split; ofs=so-(c.split if hi else 0)
    xa=(c.vxa2 if hi else c.vxa)+ks; wa=(c.vwa2 if hi else c.vwa)
    xs=[];ws=[]
    for mt in range(4):
        r=c.fx[fset]+4*mt
        xs.append((f'ds_read_b128 a[{r}:{r+3}], v{xa} offset:{ofs+mt*2048}',('x',fset,mt)))
    for t in range(c.NT):
        r=c.fw[fset]+4*t; b=t%c.nwb
        o=ofs+ks*32*P+(t-b)*32
        assert o+4*P<65536
        ws.append([(f'ds_read_b64_tr_b16 a[{r}:{r+1}], v{wa+b} offset:{o}',('w',fset,t)),
                   (f'ds_read_b64_tr_b16 a[{r+2}:{r+3}], v{wa+b} offset:{o+4*P}',('w',fset,t))])
    out=ws[0]+xs
    for w in ws[1:]: out+=w
    return out

def mfmas(c,fset):
    out=[]
    for t in range(c.NT):
        for mt in range(4):
            a=c.acc+4*(mt*c.NT+t); w=c.fw[fset]+4*t; x=c.fx[fset]+4*mt
            out.append((f'v_mfma_f32_16x16x32_bf16 v[{a}:{a+3}], a[{w}:{w+3}], a[{x}:{x+3}], v[{a}:{a+3}]',[('w',fset,t),('x',fset,mt)]))
    return out

class LQ:
    def __init__(self,k): self.k=k; self.q=[]
    def issue(self,ins,tag): self.k(ins); self.q.append(tag)
    def need(self,tags):
        idx=-1
        for i,t in enumerate(self.q):
            if t in tags: idx=i
        if idx>=0:
            n=len(self.q)-1-idx
            n=min(n,15)
            self.k(f's_waitcnt lgkmcnt({n})')
            self.q=self.q[len(self.q)-n:] if n else []
    def drain(self):
        if self.q: self.k('s_waitcnt lgkmcnt(0)')
        self.q=[]

def phase(k,lq,mf,rd,bar_at=None,pre_bar=None):
    ri=0; n=len(mf)
    start=0 if bar_at is None else bar_at
    slots=n-start
    for i,(m,tags) in enumerate(mf):
        lq.need(tags); k(m)
        if bar_at is not None and i==bar_at:
            lq.drain()
            if pre_bar: k(pre_bar)
            k('s_barrier')
        if i>=start:
            left=len(rd)-ri; rem=n-i
            cnt=1 if left<=rem else -(-left//rem)
            for _ in range(cnt):
                if ri<len(rd): lq.issue(*rd[ri]); ri+=1
    assert ri==len(rd)

def compute_main(k,c,last_pre_bar=None):
    S=c.S; R=c.R
    lq=LQ(k)
    k('s_barrier')
    if STAMPS: k('s_memtime s[62:63]'); k('s_waitcnt lgkmcnt(0)')
    for r in frag_reads(c,0,0,0): lq.issue(*r)
    q0=list(lq.q)
    def stage(s,last=False):
        slot=s%R
        phase(k,lq,mfmas(c,0),frag_reads(c,slot,1,1))
        phase(k,lq,mfmas(c,1),[] if last else frag_reads(c,(s+1)%R,0,0),bar_at=c.bar_at,pre_bar=last_pre_bar if last else None)
        if not last: assert lq.q==q0,(lq.q,q0)
    nloop=(S-1)//R
    k(f's_mov_b32 s{s_cnt}, {nloop}')
    Lb=k.newlabel('cm'); k('.p2align 3'); k.label(Lb)
    for s in range(R): stage(s)
    k(f's_sub_u32 s{s_cnt}, s{s_cnt}, 1')
    k(f's_cmp_lg_u32 s{s_cnt}, 0')
    k(f's_cbranch_scc1 {Lb}')
    for s in range(nloop*R,S): stage(s,s==S-1)
    if STAMPS: k('s_memtime s[64:65]'); k('s_waitcnt lgkmcnt(0)')

def tile_map(k, ntn, xr, xc, idx='s17'):
    nxc=ntn//xc
    k(f's_lshr_b32 s{s_t0}, s28, {int(math.log2(nxc))}')
    k(f's_mul_i32 s{s_t0}, s{s_t0}, {xr}')
    k(f's_lshr_b32 s{s_t1}, s29, {int(math.log2(xc))}')
    k(f's_add_u32 s{s_rb}, s{s_t0}, s{s_t1}')
    k(f's_and_b32 s{s_t0}, s28, {nxc-1}')
    k(f's_mul_i32 s{s_t0}, s{s_t0}, {xc}')
    k(f's_and_b32 s{s_t1}, s29, {xc-1}')
    k(f's_add_u32 s{s_cb}, s{s_t0}, s{s_t1}')

def entry(k):
    k('s_cmp_ge_u32 s2, 256')
    k(f's_cbranch_scc1 {k.name}_end')
    if STAMPS: k('s_memtime s[60:61]'); k('s_memrealtime s[70:71]')
    srd(k,S_WS,'ws',WS_SIZE)
    k('v_lshrrev_b32 v2, 6, v0')
    k('v_and_b32 v1, 63, v0')
    k(f'v_readfirstlane_b32 s{s_wave}, v2')
    k('s_and_b32 s28, s2, 7')
    k('s_lshr_b32 s29, s2, 3')
    if DBGT:
        k('s_memrealtime s[70:71]')
        k('s_memtime s[60:61]')
        k(f's_load_dwordx2 s[76:77], s[0:1], {KA["dbg"]}')

def stamp_out(k,slot,wavesel=0):
    if DBGT:
        k('s_waitcnt vmcnt(0)')
        k('s_memrealtime s[72:73]')
        k('s_memtime s[62:63]')
        k('s_waitcnt lgkmcnt(0)')
        k(f's_cmp_lg_u32 s{s_wave}, {wavesel}')
        k(f's_cbranch_scc1 {k.name}_end')
        k(f's_sub_u32 s76, s76, {slot*512}')
        k('s_subb_u32 s77, s77, 0')
        k('s_mov_b32 s78, 256'); k('s_mov_b32 s79, 0x20000')
        k('s_sub_u32 s70, 0, s70')
        k('s_sub_u32 s62, s62, s60')
        k('v_mov_b32 v20, s70'); k('v_mov_b32 v21, s72'); k('v_mov_b32 v22, s62'); k('v_mov_b32 v2, 0')
        k('s_mov_b64 exec, 1')
        k(f'buffer_atomic_umax v20, v2, s[76:79], 0 offen offset:{slot*12}')
        k(f'buffer_atomic_umax v21, v2, s[76:79], 0 offen offset:{slot*12+4}')
        k(f'buffer_atomic_umax v22, v2, s[76:79], 0 offen offset:{slot*12+8}')
        return
    if not STAMPS: return
    k('s_memtime s[66:67]')
    k('s_waitcnt vmcnt(0)')
    k('s_memtime s[68:69]')
    k('s_memrealtime s[72:73]')
    k('s_waitcnt lgkmcnt(0)')
    k(f's_cmp_lg_u32 s{s_wave}, {wavesel}')
    k(f's_cbranch_scc1 {k.name}_end')
    k(f'''s_sub_u32 s62, s62, s60
    s_sub_u32 s64, s64, s60
    s_sub_u32 s66, s66, s60
    s_sub_u32 s68, s68, s60
    v_mov_b32 v20, s62
    v_mov_b32 v21, s64
    v_mov_b32 v22, s66
    v_mov_b32 v23, s68
    v_mov_b32 v24, s70
    v_mov_b32 v25, s72
    v_mov_b32 v26, 0
    v_mov_b32 v27, 0
    s_lshl_b32 s74, s2, 5
    s_add_u32 s74, s74, {WS_STAMP+slot*8192}
    v_mov_b32 v2, 0
    s_mov_b64 exec, 1
    buffer_store_dwordx4 v[20:23], v2, s[4:7], s74 offen
    buffer_store_dwordx4 v[24:27], v2, s[4:7], s74 offen offset:16''')

def rbf(k,dst,src):
    k(f'v_cvt_pk_bf16_f32 v{dst}, v{src}, v{src}')
    k(f'v_and_b32 v{dst}, 0xffff0000, v{dst}')

def ln_finish(k, vs, vq, t, out_m, out_rs):
    k(f'v_mul_f32 v{vs}, {f2u(1/1024):#x}, v{vs}')
    k(f'v_mul_f32 v{vq}, {f2u(1/1024):#x}, v{vq}')
    k(f'v_fma_f32 v{vq}, -v{vs}, v{vs}, v{vq}')
    k(f'v_max_f32 v{vq}, 0, v{vq}')
    rbf(k,out_m,vs)
    rbf(k,t,vq)
    k(f'v_add_f32 v{t}, {f2u(1e-5):#x}, v{t}')
    rbf(k,t,t)
    k(f'v_sqrt_f32 v{t}, v{t}')
    rbf(k,t,t)
    k(f'v_rcp_f32 v{out_rs}, v{t}')

def gelu_pairs(k, xs, tmp):
    n=len(xs)
    T=[tmp+2*i for i in range(n)]
    for x,t in zip(xs,T): k(f'v_pk_mul_f32 v[{t}:{t+1}], v[{x}:{x+1}], v[{x}:{x+1}]')
    for x,t in zip(xs,T): k(f'v_pk_fma_f32 v[{t}:{t+1}], v[{t}:{t+1}], s[44:45], v[{V_GA}:{V_GA+1}]')
    for x,t in zip(xs,T): k(f'v_pk_mul_f32 v[{t}:{t+1}], v[{t}:{t+1}], v[{x}:{x+1}]')
    for t in T:
        k(f'v_exp_f32 v{t}, v{t}'); k(f'v_exp_f32 v{t+1}, v{t+1}')
    for t in T: k(f'v_pk_add_f32 v[{t}:{t+1}], v[{t}:{t+1}], s[48:49]')
    for t in T:
        k(f'v_rcp_f32 v{t}, v{t}'); k(f'v_rcp_f32 v{t+1}, v{t+1}')
    for x,t in zip(xs,T): k(f'v_pk_mul_f32 v[{x}:{x+1}], v[{x}:{x+1}], v[{t}:{t+1}]')
V_GA=2

def gelu_consts(k):
    k(f's_mov_b32 s44, {f2u(GB):#x}'); k(f's_mov_b32 s45, {f2u(GB):#x}')
    k(f's_mov_b32 s48, 1.0'); k('s_mov_b32 s49, 1.0')
    k(f'v_mov_b32 v{V_GA}, {f2u(GA):#x}'); k(f'v_mov_b32 v{V_GA+1}, {f2u(GA):#x}')

def ln_gelu_epilogue(k,c,lds_rs,lds_cs,ncs,addr,tmp,csr,rsr,soff,late=()):
    NT=c.NT
    k('v_and_b32 v4, 15, v1')
    k(f's_lshl_b32 s{s_t0}, s{s_wm}, 9')
    k(f's_add_u32 s{s_t0}, s{s_t0}, {lds_rs}')
    k(f'v_lshl_add_u32 v4, v4, 3, s{s_t0}')
    k('v_lshrrev_b32 v5, 4, v1')
    k(f's_mul_i32 s{s_t0}, s{s_wn}, {NT*64}')
    k(f's_add_u32 s{s_t0}, s{s_t0}, {lds_cs}')
    k(f'v_lshl_add_u32 v5, v5, 4, s{s_t0}')
    for mt in range(4): k(f'ds_read_b64 v[{rsr+2*mt}:{rsr+2*mt+1}], v4 offset:{mt*128}')
    for t in range(NT):
        if t not in late: k(f'ds_read_b128 v[{csr[t]}:{csr[t]+3}], v5 offset:{t*64}')
    for p in range(1,ncs):
        for t in range(NT):
            k(f'ds_read_b128 v[{tmp+4*(t%4)}:{tmp+4*(t%4)+3}], v5 offset:{p*c.Nt*4+t*64}')
            if t%4==3 or t==NT-1:
                k('s_waitcnt lgkmcnt(0)')
                for u in range(t-t%4,t+1):
                    for h in (0,2): k(f'v_pk_add_f32 v[{csr[u]+h}:{csr[u]+h+1}], v[{csr[u]+h}:{csr[u]+h+1}], v[{tmp+4*(u%4)+h}:{tmp+4*(u%4)+h+1}]')
    k('s_waitcnt lgkmcnt(0)')
    gelu_consts(k)
    def pre(tile,t,mt):
        a=c.acc+4*tile; rs=rsr+2*mt
        for h in (0,2):
            k(f'v_pk_mul_f32 v[{tmp+h}:{tmp+h+1}], v[{csr[t]+h}:{csr[t]+h+1}], v[{rs}:{rs+1}] op_sel:[0,1] op_sel_hi:[1,1]')
        for h in (0,2):
            k(f'v_pk_fma_f32 v[{a+h}:{a+h+1}], v[{a+h}:{a+h+1}], v[{rs}:{rs+1}], v[{tmp+h}:{tmp+h+1}] op_sel:[0,0,0] op_sel_hi:[1,0,1]')
    cnt=[0]
    def pair(tA,tB,av,mt_off):
        (tileA,t_a,mt_a),(tileB,t_b,mt_b)=tA,tB
        pre(tileA,t_a,mt_a); pre(tileB,t_b,mt_b)
        a=c.acc+4*tileA; b=c.acc+4*tileB
        gelu_pairs(k,[a,a+2,b,b+2],tmp)
        o=tmp+8+4*(cnt[0]%2); cnt[0]+=1
        k(f'v_cvt_pk_bf16_f32 v{o}, v{a}, v{a+1}')
        k(f'v_cvt_pk_bf16_f32 v{o+1}, v{a+2}, v{a+3}')
        k(f'v_cvt_pk_bf16_f32 v{o+2}, v{b}, v{b+1}')
        k(f'v_cvt_pk_bf16_f32 v{o+3}, v{b+2}, v{b+3}')
        k(f's_add_u32 s{s_t1}, s{soff}, {mt_off*2048}')
        k(f'v_permlane16_swap_b32 v{o}, v{o+2}')
        k(f'v_permlane16_swap_b32 v{o+1}, v{o+3}')
        k(f'buffer_store_dwordx4 v[{o}:{o+3}], v{av}, s[{S_WS}:{S_WS+3}], s{s_t1} offen {ST}')
    for mt in range(4):
        for tp in range(NT//2):
            t=2*tp
            pair((mt*NT+t,t,mt),(mt*NT+t+1,t+1,mt),addr[tp],mt)
            if late and mt==0 and tp==0:
                for u in late: k(f'ds_read_b128 v[{csr[u]}:{csr[u]+3}], v5 offset:{u*64}')
            if late and mt==0 and tp==1: k('s_waitcnt lgkmcnt(0)')
        if NT%2 and mt%2==1:
            t=NT-1
            pair(((mt-1)*NT+t,t,mt-1),(mt*NT+t,t,mt),addr[NT//2],mt-1)

def finish(k):
    k.label(k.name+'_end')
    k('s_endpgm')
    k.lines,n=hazard.fix(k.lines)
    return k

def reduce8_to2(k, a):
    for i in range(4): k(f'v_permlane32_swap_b32 v{a+i}, v{a+4+i}')
    for i in range(4): k(f'v_add_f32 v{a+i}, v{a+i}, v{a+4+i}')
    for i in range(2): k(f'v_permlane16_swap_b32 v{a+i}, v{a+2+i}')
    for i in range(2): k(f'v_add_f32 v{a+i}, v{a+i}, v{a+2+i}')

def gen_k1():
    c=mkcfg(128,1024,4,2048,'rows',128)
    LDS_RS=c.ring; LDS_CS=c.ring+1024
    k=Kernel('k1_kernel',256,512,c.ring+1024+2048,vgpr=192,agpr=64)
    entry(k)
    k('s_cmp_ge_u32 s29, 16')
    k('s_cbranch_scc1 k1_prep')
    srd(k,S_X,'q',2048*2048)
    srd(k,S_W,'w1',1024*2048)
    tile_map(k,8,4,4)
    k(f's_lshl_b32 s{s_xo}, s{s_rb}, 18')
    k(f's_lshl_b32 s{s_wo}, s{s_cb}, 8')
    k(f's_cmp_ge_u32 s{s_wave}, 4')
    k('s_cbranch_scc1 k1_loader')
    c.vxa=6; c.vxa2=8; c.vwa=10; c.vwa2=14; c.acc=32; c.fx=(0,32); c.fw=(16,48)
    compute_setup(k,c)
    for i in range(64): k(f'v_mov_b32 v{c.acc+i}, 0')
    k(f's_lshr_b32 s{s_t0}, s{s_cb}, 2')
    k(f's_add_u32 s{s_t0}, s{s_t0}, 1')
    k(f's_sub_u32 s{s_t1}, 0, s{s_t0}')
    k(f's_bitcmp1_b32 s{s_cb}, 1')
    k(f's_cselect_b32 s{s_t0}, s{s_t1}, s{s_t0}')
    k(f's_add_u32 s{s_t0}, s{s_t0}, 8')
    k('v_and_b32 v2, 15, v1')
    k(f'v_add_u32 v2, s{s_t0}, v2')
    k('v_lshrrev_b32 v3, 4, v1')
    k('v_and_b32 v4, 1, v3')
    k('v_lshrrev_b32 v3, 1, v3')
    k('v_lshl_or_b32 v3, v4, 1, v3')
    k('v_and_b32 v4, 7, v2')
    k('v_xor_b32 v3, v3, v4')
    k('v_lshlrev_b32 v3, 4, v3')
    k('v_lshl_add_u32 v28, v2, 7, v3')
    k('v_xor_b32 v29, 64, v28')
    k(f's_lshl_b32 s{s_t2}, s{s_cb}, 1')
    k(f's_add_u32 s{s_t2}, s{s_t2}, s{s_wn}')
    k(f's_mul_i32 s{s_t2}, s{s_t2}, {PANEL_H}')
    k(f's_lshl_b32 s{s_t0}, s{s_rb}, 14')
    k(f's_add_u32 s{s_t2}, s{s_t2}, s{s_t0}')
    k(f's_lshl_b32 s{s_t0}, s{s_wm}, 13')
    k(f's_add_u32 s{s_t2}, s{s_t2}, s{s_t0}')
    if WS_H: k(f's_add_u32 s{s_t2}, s{s_t2}, {WS_H}')
    k('s_waitcnt lgkmcnt(0)')
    compute_main(k,c)
    k('s_barrier')
    ln_gelu_epilogue(k,c,LDS_RS,LDS_CS,4,[28,29],96,[112,116,120,124],20,s_t2)
    stamp_out(k,0)
    k('s_endpgm')
    k.label('k1_loader')
    loader_setup(k,c)
    k(f'v_lshl_add_u32 v20, v1, 4, s{s_lx}')
    k(f'v_add_u32 v21, {c.split}, v20')
    k('v_lshrrev_b32 v2, 4, v1')
    k('v_and_b32 v3, 15, v1')
    k('v_lshlrev_b32 v4, 1, v2')
    k('v_xor_b32 v3, v3, v4')
    k('v_lshlrev_b32 v3, 4, v3')
    k('v_lshl_add_u32 v3, v2, 8, v3')
    k(f'v_add_u32 v22, s{s_lwb}, v3')
    k('v_xor_b32 v23, 128, v22')
    k(f'v_add_u32 v24, {c.split}, v22')
    k(f'v_add_u32 v25, {c.split}, v23')
    for i in range(16): k(f'v_mov_b32 v{64+i}, 0')
    k('s_mov_b32 s44, 0x3f803f80'); k('s_mov_b32 s45, 0x00003f80'); k('s_mov_b32 s46, 0x3f800000')
    def aux(slot):
        so=slot*c.stage; hi=so>=c.split; ofs=so-(c.split if hi else 0)
        for i in range(4): k(f'ds_read_b128 v[{32+4*i}:{35+4*i}], v{21 if hi else 20} offset:{ofs+1024*i}')
        for i in range(4): k(f'ds_read_b128 v[{48+4*i}:{51+4*i}], v{(24 if hi else 22)+(i>>1)} offset:{ofs+1024*i}')
        k('s_waitcnt lgkmcnt(4)')
        for d in range(4):
            for i in range(4):
                k(f'v_dot2c_f32_bf16 v{64+2*i}, s44, v{32+4*i+d}')
                k(f'v_dot2c_f32_bf16 v{65+2*i}, v{32+4*i+d}, v{32+4*i+d}')
        k('s_waitcnt lgkmcnt(0)')
        for i in range(4):
            for d in range(4):
                k(f'v_dot2c_f32_bf16 v{72+2*d}, s45, v{48+4*i+d}')
                k(f'v_dot2c_f32_bf16 v{73+2*d}, s46, v{48+4*i+d}')
    c.aux=aux
    k('s_waitcnt lgkmcnt(0)')
    loader_main(k,c)
    reduce8_to2(k,72)
    k('v_and_b32 v2, 15, v1')
    k('v_lshrrev_b32 v3, 4, v1')
    k('v_lshlrev_b32 v3, 3, v3')
    k('v_lshl_add_u32 v2, v2, 5, v3')
    k(f's_lshl_b32 s{s_t0}, s{s_lw}, 9')
    k(f's_add_u32 s{s_t0}, s{s_t0}, {LDS_CS}')
    k(f'v_add_u32 v2, s{s_t0}, v2')
    k('ds_write_b64 v2, v[72:73]')
    for m in ('quad_perm:[1,0,3,2]','quad_perm:[2,3,0,1]','row_half_mirror'):
        for i in range(8): k(f'v_add_f32_dpp v{64+i}, v{64+i}, v{64+i} {m} row_mask:0xf bank_mask:0xf')
    k('v_and_b32 v2, 1, v1'); k('v_cmp_eq_u32 vcc, 1, v2')
    for h in range(2):
        k(f'v_cndmask_b32 v{64+h}, v{64+h}, v{66+h}, vcc')
        k(f'v_cndmask_b32 v{68+h}, v{68+h}, v{70+h}, vcc')
    k('v_and_b32 v2, 2, v1'); k('v_cmp_eq_u32 vcc, 2, v2')
    for h in range(2): k(f'v_cndmask_b32 v{64+h}, v{64+h}, v{68+h}, vcc')
    ln_finish(k,64,65,66,32,33)
    k('v_sub_f32 v64, v64, v32')
    k('v_mul_f32 v64, v64, v33')
    k('v_mul_f32 v65, v65, v33')
    k('v_mul_f32 v65, v65, v33')
    rbf(k,64,64); rbf(k,65,65)
    k(f'v_add_f32 v65, {f2u(1e-5):#x}, v65')
    rbf(k,65,65)
    k('v_sqrt_f32 v65, v65')
    rbf(k,65,65)
    k('v_rcp_f32 v65, v65')
    k('v_fma_f32 v64, v32, v33, v64')
    k('v_mul_f32 v34, v33, v65')
    k('v_mul_f32 v35, v64, v65')
    k('v_sub_f32 v35, 0, v35')
    k('v_and_b32 v2, 3, v1')
    k('v_lshrrev_b32 v3, 3, v1')
    k('v_lshl_add_u32 v2, v2, 3, v3')
    k(f's_lshl_b32 s{s_t0}, s{s_lw}, 5')
    k(f'v_add_u32 v2, s{s_t0}, v2')
    k('v_lshlrev_b32 v2, 3, v2')
    k(f'v_add_u32 v3, {LDS_RS}, v2')
    k('ds_write_b64 v3, v[34:35]')
    k(f's_cmp_lg_u32 s{s_cb}, 0')
    k('s_cbranch_scc1 k1_nost')
    k(f's_lshl_b32 s{s_t0}, s{s_rb}, 10')
    k(f's_add_u32 s{s_t0}, s{s_t0}, {WS_ST1}')
    k(f'buffer_store_dwordx2 v[32:33], v2, s[{S_WS}:{S_WS+3}], s{s_t0} offen {ST}')
    k.label('k1_nost')
    k('s_waitcnt lgkmcnt(0)')
    k('s_barrier')
    k('s_endpgm')
    k.label('k1_prep')
    srd(k,S_X,'k',2048*2048)
    srd(k,S_W,'v',2048*2048)
    srd(k,S_A,'shk',1024*8)
    srd(k,S_B,'w3',1024*7168)
    k('s_sub_u32 s29, s29, 16')
    k('s_lshl_b32 s29, s29, 3')
    k('s_add_u32 s29, s29, s28')
    k(f's_lshr_b32 s{s_rb}, s29, 4')
    k(f's_and_b32 s{s_cb}, s29, 15')
    k('v_and_b32 v2, 7, v0')
    k('v_lshrrev_b32 v3, 3, v0')
    k(f's_lshl_b32 s{s_t0}, s{s_rb}, 19')
    k(f's_lshl_b32 s{s_t1}, s{s_cb}, 7')
    k(f's_add_u32 s{s_t0}, s{s_t0}, s{s_t1}')
    k('v_lshlrev_b32 v4, 13, v3')
    k('v_lshl_add_u32 v4, v2, 4, v4')
    k(f'v_add_u32 v6, s{s_t0}, v4')
    k('v_subrev_u32 v7, 6144, v6')
    k('v_subrev_u32 v8, 2048, v6')
    k('v_add_u32 v9, 4096, v6')
    k('v_lshlrev_b32 v10, 6, v2')
    k(f's_lshl_b32 s{s_t2}, s{s_cb}, 9')
    k('s_cmp_ge_u32 s29, 56')
    k(f's_cselect_b32 s{s_t0}, 1, 0')
    k(f's_mul_i32 s{s_t1}, s{s_t0}, 56')
    k(f's_sub_u32 s{s_t1}, s29, s{s_t1}')
    k(f's_mul_i32 s{s_t3}, s{s_t0}, {512*7168}')
    k(f's_lshl_b32 s{s_xo}, s{s_t1}, 7')
    k(f's_add_u32 s{s_xo}, s{s_xo}, s{s_t3}')
    k(f's_mul_i32 s{s_wo}, s{s_t0}, {3584*4}')
    k(f's_lshl_b32 s{s_t3}, s{s_t1}, 8')
    k(f's_add_u32 s{s_wo}, s{s_wo}, s{s_t3}')
    k(f's_add_u32 s{s_wo}, s{s_wo}, {WS_CS3}')
    k('v_mul_u32_u24 v11, 7168, v3')
    k('v_lshl_add_u32 v11, v2, 4, v11')
    k('s_waitcnt lgkmcnt(0)')
    KR=16; VR=44; SR=60; WR=76
    krows=[(7,0),(7,2048),(8,0),(6,0),(6,2048),(9,0),(9,2048)]
    for i,(v,o) in enumerate(krows): k(f'buffer_load_dwordx4 v[{KR+4*i}:{KR+4*i+3}], v{v}, s[{S_X}:{S_X+3}], 0 offen offset:{o}')
    for i,(v,o) in enumerate(krows[3:]): k(f'buffer_load_dwordx4 v[{VR+4*i}:{VR+4*i+3}], v{v}, s[{S_W}:{S_W+3}], 0 offen offset:{o}')
    for i in range(4): k(f'buffer_load_dwordx4 v[{SR+4*i}:{SR+4*i+3}], v10, s[{S_A}:{S_A+3}], s{s_t2} offen offset:{16*i}')
    k('s_cmp_ge_u32 s29, 112')
    k('s_cbranch_scc1 k1_now3')
    for i in range(8):
        k(f'buffer_load_dwordx4 v[{WR+4*i}:{WR+4*i+3}], v11, s[{S_B}:{S_B+3}], s{s_xo} offen')
        if i<7: k(f's_add_u32 s{s_xo}, s{s_xo}, {64*7168}')
    k('s_waitcnt vmcnt(8)')
    k('s_branch k1_kv')
    k.label('k1_now3')
    k('s_cmp_lg_u32 s29, 112')
    k('s_cbranch_scc1 k1_kv0')
    k('v_cmp_gt_u32 vcc, 24, v3')
    k('s_and_saveexec_b64 s[50:51], vcc')
    k('s_cbranch_execz k1_zdone')
    k('v_subrev_u32 v12, 8, v3')
    k('v_lshrrev_b32 v13, 1, v12')
    k('v_add_u32 v13, 8, v13')
    k('v_and_b32 v12, 1, v12')
    k('v_cmp_gt_u32 vcc, 8, v3')
    k('v_cndmask_b32 v13, v13, v3, vcc')
    k('v_cndmask_b32 v12, v12, 0, vcc') if False else k('v_mov_b32 v14, 0')
    k('v_cndmask_b32 v12, v12, v14, vcc')
    k('v_bfe_u32 v14, v13, 2, 1')
    k('v_sub_u32 v15, 2047, v12')
    k('v_cmp_eq_u32 vcc, 1, v14')
    k('v_cndmask_b32 v12, v12, v15, vcc')
    k('v_add_u32 v12, 8, v12')
    k(f's_mov_b32 s{s_t0}, {PANEL_H}')
    k(f'v_mul_lo_u32 v13, v13, s{s_t0}')
    k('v_lshl_add_u32 v13, v12, 7, v13')
    k('v_lshl_add_u32 v13, v2, 4, v13')
    for i in range(4): k(f'v_mov_b32 v{WR+i}, 0')
    k(f's_mov_b32 s{s_t0}, {WS_H}')
    k(f'buffer_store_dwordx4 v[{WR}:{WR+3}], v13, s[{S_WS}:{S_WS+3}], s{s_t0} offen {ST}')
    k.label('k1_zdone')
    k('s_mov_b64 exec, s[50:51]')
    k.label('k1_kv0')
    k('s_waitcnt vmcnt(0)')
    k.label('k1_kv')
    KU=108; SU=136; VU=152; AC=156; OUT=160
    def unp(dst,src):
        k(f'v_lshlrev_b32 v{dst}, 16, v{src}')
        k(f'v_and_b32 v{dst+1}, 0xffff0000, v{src}')
    for half in range(2):
        for r in range(7):
            for d in range(2): unp(KU+4*r+2*d, KR+4*r+2*half+d)
        for e in range(4):
            ch=4*half+e
            k(f'v_lshlrev_b32 v{SU+0+e}, 16, v{SR+2*ch}')
            k(f'v_and_b32 v{SU+4+e}, 0xffff0000, v{SR+2*ch}')
            k(f'v_lshlrev_b32 v{SU+8+e}, 16, v{SR+2*ch+1}')
            k(f'v_and_b32 v{SU+12+e}, 0xffff0000, v{SR+2*ch+1}')
        for rho in range(4):
            for d in range(2): unp(VU+2*d, VR+4*rho+2*half+d)
            for j in (3,2,1,0):
                for h in (0,2):
                    kk=KU+4*(rho+3-j)+h; ss=SU+4*j+h
                    if j==3: k(f'v_pk_mul_f32 v[{AC+h}:{AC+h+1}], v[{kk}:{kk+1}], v[{ss}:{ss+1}]')
                    else: k(f'v_pk_fma_f32 v[{AC+h}:{AC+h+1}], v[{kk}:{kk+1}], v[{ss}:{ss+1}], v[{AC+h}:{AC+h+1}]')
            for h in (0,2): k(f'v_pk_mul_f32 v[{AC+h}:{AC+h+1}], v[{AC+h}:{AC+h+1}], v[{VU+h}:{VU+h+1}]')
            for d in range(2): k(f'v_cvt_pk_bf16_f32 v{OUT+4*rho+2*half+d}, v{AC+2*d}, v{AC+2*d+1}')
    k('v_lshlrev_b32 v4, 4, v0')
    for rho in range(4): k(f'ds_write_b128 v4, v[{OUT+4*rho}:{OUT+4*rho+3}] offset:{rho*8192}')
    k('s_cmp_ge_u32 s29, 112')
    k('s_cbranch_scc1 k1_nocs')
    k('s_mov_b32 s45, 0x00003f80'); k('s_mov_b32 s46, 0x3f800000')
    for i in range(8): k(f'v_mov_b32 v{KU+i}, 0')
    k('s_waitcnt vmcnt(0)')
    for i in range(8):
        for d in range(4):
            k(f'v_dot2c_f32_bf16 v{KU+2*d}, s45, v{WR+4*i+d}')
            k(f'v_dot2c_f32_bf16 v{KU+2*d+1}, s46, v{WR+4*i+d}')
    reduce8_to2(k,KU)
    for i in range(2): k(f'v_add_f32_dpp v{KU+i}, v{KU+i}, v{KU+i} row_ror:8 row_mask:0xf bank_mask:0xf')
    k('v_lshrrev_b32 v5, 4, v1')
    k('v_lshlrev_b32 v5, 3, v5')
    k('v_lshl_add_u32 v5, v2, 5, v5')
    k(f's_lshl_b32 s{s_t0}, s{s_wave}, 8')
    k(f'v_add_u32 v5, s{s_t0}, v5')
    k(f'ds_write_b64 v5, v[{KU}:{KU+1}] offset:32768')
    k.label('k1_nocs')
    k('s_waitcnt lgkmcnt(0)')
    k('s_barrier')
    k(f's_lshr_b32 s{s_t0}, s{s_wave}, 1')
    k(f's_and_b32 s{s_t1}, s{s_wave}, 1')
    k('v_lshrrev_b32 v4, 4, v1')
    k('v_bfe_u32 v5, v1, 2, 2')
    k('v_lshl_add_u32 v5, v4, 3, v5')
    k('v_and_b32 v6, 3, v1')
    k('v_lshlrev_b32 v6, 3, v6')
    k('v_lshl_add_u32 v5, v5, 7, v6')
    k(f's_lshl_b32 s{s_t2}, s{s_t0}, 13')
    k(f's_lshl_b32 s{s_t3}, s{s_t1}, 6')
    k(f's_add_u32 s{s_t2}, s{s_t2}, s{s_t3}')
    k(f'v_add_u32 v5, s{s_t2}, v5')
    for dg in range(2):
        for hq in range(2):
            for h in range(2):
                r=16+8*(2*dg+hq)//2+0
                r=16+(dg*2+hq)*4+2*h
                k(f'ds_read_b64_tr_b16 v[{r}:{r+1}], v5 offset:{dg*32+hq*32*128+h*4*128}')
    k('v_and_b32 v6, 15, v1')
    k('v_lshlrev_b32 v6, 12, v6')
    k('v_lshl_add_u32 v6, v4, 4, v6')
    k(f's_lshl_b32 s{s_t2}, s{s_cb}, 18')
    k(f's_lshl_b32 s{s_t3}, s{s_t1}, 17')
    k(f's_add_u32 s{s_t2}, s{s_t2}, s{s_t3}')
    k(f's_lshl_b32 s{s_t3}, s{s_t0}, 10')
    k(f's_add_u32 s{s_t2}, s{s_t2}, s{s_t3}')
    k(f's_lshl_b32 s{s_t3}, s{s_rb}, 7')
    k(f's_add_u32 s{s_t2}, s{s_t2}, s{s_t3}')
    k(f's_add_u32 s{s_t2}, s{s_t2}, {WS_KVT}')
    k(f's_add_u32 s{s_t3}, s{s_t2}, 65536')
    k('s_waitcnt lgkmcnt(0)')
    for dg in range(2):
        for hq in range(2):
            r=16+(dg*2+hq)*4
            k(f'buffer_store_dwordx4 v[{r}:{r+3}], v6, s[{S_WS}:{S_WS+3}], s{s_t3 if dg else s_t2} offen offset:{hq*64} {ST}')
    k('s_cmp_ge_u32 s29, 112')
    k('s_cbranch_scc1 k1_pend')
    k(f's_cmp_lg_u32 s{s_wave}, 0')
    k('s_cbranch_scc1 k1_pend')
    k('v_lshlrev_b32 v4, 2, v1')
    for i in range(8): k(f'ds_read_b32 v{40+i}, v4 offset:{32768+i*256}')
    k('s_waitcnt lgkmcnt(0)')
    for i in range(1,8): k(f'v_add_f32 v40, v40, v{40+i}')
    k(f'buffer_store_dword v40, v4, s[{S_WS}:{S_WS+3}], s{s_wo} offen {ST}')
    k.label('k1_pend')
    if STAMPS:
        k('s_mov_b64 s[62:63], s[60:61]'); k('s_mov_b64 s[64:65], s[60:61]')
    stamp_out(k,0)
    return finish(k)

def unp(k,dst,src):
    k(f'v_lshlrev_b32 v{dst}, 16, v{src}')
    k(f'v_and_b32 v{dst+1}, 0xffff0000, v{src}')

def cprime(k,dst,tmp):
    k(f'v_lshrrev_b32 v{dst}, 4, v1')
    k(f'v_and_b32 v{tmp}, 1, v{dst}')
    k(f'v_lshrrev_b32 v{dst}, 1, v{dst}')
    k(f'v_lshl_or_b32 v{dst}, v{tmp}, 1, v{dst}')

def gen_k2():
    c=mkcfg(128,1024,4,2048,'panel',PANEL_H)
    k=Kernel('k2_kernel',256,512,c.ring,vgpr=192,agpr=64)
    entry(k)
    k('s_cmp_ge_u32 s29, 16')
    k('s_cbranch_scc1 k2_conv')
    srd(k,S_X,'q',2048*2048)
    srd(k,S_W,'w2',1024*2048)
    tile_map(k,8,4,4)
    k(f's_lshl_b32 s{s_xo}, s{s_rb}, 14')
    k(f's_add_u32 s{s_xo}, s{s_xo}, {WS_H+8*128}')
    k(f's_lshl_b32 s{s_wo}, s{s_cb}, 8')
    k(f's_cmp_ge_u32 s{s_wave}, 4')
    k('s_cbranch_scc1 k2_loader')
    c.vxa=6; c.vxa2=8; c.vwa=10; c.vwa2=14; c.acc=32; c.fx=(0,32); c.fw=(16,48)
    k(f's_lshr_b32 s{s_wm}, s{s_wave}, 1')
    k(f's_and_b32 s{s_wn}, s{s_wave}, 1')
    k('v_and_b32 v2, 15, v1')
    cprime(k,3,4)
    k('v_lshlrev_b32 v4, 11, v2')
    k('v_lshl_add_u32 v18, v3, 4, v4')
    k('v_lshlrev_b32 v19, 3, v2')
    k(f's_lshl_b32 s{s_t0}, s{s_rb}, 1')
    k(f's_add_u32 s{s_t0}, s{s_t0}, s{s_wm}')
    k(f's_lshl_b32 s{s_t1}, s{s_cb}, 1')
    k(f's_add_u32 s{s_t1}, s{s_t1}, s{s_wn}')
    k(f's_lshl_b32 s50, s{s_t0}, 17')
    k(f's_lshl_b32 s51, s{s_t1}, 7')
    k('s_add_u32 s50, s50, s51')
    k(f's_lshl_b32 s51, s{s_t0}, 9')
    k(f's_add_u32 s52, s51, {WS_ST1}')
    k(f's_lshl_b32 s53, s{s_t1}, 14')
    k('s_add_u32 s53, s53, s51')
    k(f's_add_u32 s53, s53, {WS_ST3}')
    k(f's_lshl_b32 s54, s{s_t1}, 18')
    k(f's_lshl_b32 s51, s{s_t0}, 13')
    k('s_add_u32 s54, s54, s51')
    k(f's_add_u32 s54, s54, {WS_X1}')
    k('v_and_b32 v4, 7, v2')
    k('v_xor_b32 v3, v3, v4')
    k('v_lshlrev_b32 v3, 4, v3')
    k('v_lshl_add_u32 v28, v2, 7, v3')
    k('v_xor_b32 v29, 64, v28')
    k('s_waitcnt lgkmcnt(0)')
    RAW=96
    for mt in range(4): k(f'buffer_load_dwordx2 v[{20+2*mt}:{21+2*mt}], v19, s[{S_WS}:{S_WS+3}], s52 offen offset:{mt*128}')
    for mt in range(4):
        for tp in range(2):
            r=RAW+4*(2*mt+tp)
            k(f'buffer_load_dwordx4 v[{r}:{r+3}], v18, s[{S_X}:{S_X+3}], s50 offen offset:{tp*64}')
        if mt<3: k('s_add_u32 s50, s50, 32768')
    compute_setup(k,c)
    k('s_waitcnt vmcnt(8)')
    for mt in range(4):
        k(f'v_mul_f32 v{20+2*mt}, v{20+2*mt}, v{21+2*mt}')
        k(f'v_sub_f32 v{20+2*mt}, 0, v{20+2*mt}')
    for mt in range(4):
        k(f's_waitcnt vmcnt({6-2*mt})')
        for tp in range(2):
            r=RAW+4*(2*mt+tp)
            k(f'v_permlane16_swap_b32 v{r}, v{r+2}')
            k(f'v_permlane16_swap_b32 v{r+1}, v{r+3}')
        for tp in range(2):
            r=RAW+4*(2*mt+tp); a=c.acc+4*(mt*4+2*tp); rs=20+2*mt
            for d in range(4): unp(k,a+2*d,r+d)
            for d in range(4): k(f'v_pk_fma_f32 v[{a+2*d}:{a+2*d+1}], v[{a+2*d}:{a+2*d+1}], v[{rs}:{rs+1}], v[{rs}:{rs+1}] op_sel:[0,1,0] op_sel_hi:[1,1,0]')
            for d in range(4): k(f'v_cvt_pk_bf16_f32 v{r+d}, v{a+2*d}, v{a+2*d+1}')
            for d in range(4): unp(k,a+2*d,r+d)
    compute_main(k,c)
    k('s_mov_b32 s44, 0x3f803f80')
    for i in range(8): k(f'v_mov_b32 v{20+i}, 0')
    n=0
    for mt in range(4):
        for tp in range(2):
            a=c.acc+4*(mt*4+2*tp); o=RAW+4*n; n+=1
            for d in range(4): k(f'v_cvt_pk_bf16_f32 v{o+d}, v{a+2*d}, v{a+2*d+1}')
            k(f's_add_u32 s{s_t1}, s54, {mt*2048}')
            k(f'v_permlane16_swap_b32 v{o}, v{o+2}')
            k(f'v_permlane16_swap_b32 v{o+1}, v{o+3}')
            k(f'buffer_store_dwordx4 v[{o}:{o+3}], v{28+tp}, s[{S_WS}:{S_WS+3}], s{s_t1} offen {ST}')
            for d in range(4):
                k(f'v_dot2c_f32_bf16 v{20+2*mt}, s44, v{o+d}')
                k(f'v_dot2c_f32_bf16 v{21+2*mt}, v{o+d}, v{o+d}')
    reduce8_to2(k,20)
    k('v_lshlrev_b32 v2, 3, v1')
    k(f'buffer_store_dwordx2 v[20:21], v2, s[{S_WS}:{S_WS+3}], s53 offen {ST}')
    stamp_out(k,1)
    k('s_endpgm')
    k.label('k2_loader')
    loader_setup(k,c)
    k('s_waitcnt lgkmcnt(0)')
    loader_main(k,c)
    k('s_endpgm')
    k.label('k2_conv')
    srd(k,S_X,'ssmk',1024*4096)
    k(f's_load_dwordx2 s[16:17], s[0:1], {KA["ssmD"]}')
    k('s_sub_u32 s29, s29, 16')
    k('s_lshl_b32 s29, s29, 3')
    k('s_add_u32 s29, s29, s28')
    k('s_lshl_b32 s29, s29, 3')
    k(f's_add_u32 s29, s29, s{s_wave}')
    WBS=8832; UO=4224
    k(f's_mul_i32 s50, s{s_wave}, {WBS}')
    k('s_lshl_b32 s51, s29, 12')
    k(f's_add_u32 s52, s51, {WS_KVT}')
    k(f's_add_u32 s53, s51, {WS_Y2T}')
    k('s_lshr_b32 s54, s29, 1')
    k('s_lshl_b32 s54, s54, 2')
    k('v_lshlrev_b32 v2, 4, v1')
    k('s_waitcnt lgkmcnt(0)')
    k('s_load_dword s55, s[16:17], s54')
    k('s_add_u32 m0, s50, 32')
    for i in range(4): k(f'buffer_load_dwordx4 v2, s[{S_X}:{S_X+3}], s51 offen offset:{i*1024} lds')
    for r in range(4):
        k(f's_add_u32 m0, s50, {UO+128+r*128}')
        k(f'buffer_load_dwordx4 v2, s[{S_WS}:{S_WS+3}], s52 offen offset:{r*1024} lds')
    k('v_lshrrev_b32 v3, 3, v1')
    k('v_mul_u32_u24 v3, 1152, v3')
    k('v_and_b32 v4, 7, v1')
    k('v_lshl_add_u32 v3, v4, 4, v3')
    k(f'v_add_u32 v3, {UO}, v3')
    k('v_and_b32 v4, 1, v1')
    k('v_lshlrev_b32 v4, 4, v4')
    k('v_cmp_gt_u32 vcc, 32, v1')
    k('v_cndmask_b32 v3, v4, v3, vcc')
    k('v_add_u32 v3, s50, v3')
    for i in range(32): k(f'v_mov_b32 v{32+i}, 0')
    k('ds_write_b128 v3, v[32:35]')
    k('v_lshrrev_b32 v3, 4, v1')
    k('v_bfe_u32 v4, v1, 2, 2')
    k('v_and_b32 v5, 3, v1')
    k('v_lshlrev_b32 v6, 6, v3')
    k('v_lshl_add_u32 v6, v4, 3, v6')
    k('v_lshlrev_b32 v5, 3, v5')
    k('v_sub_u32 v6, v5, v6')
    k('v_add_u32 v6, 224, v6')
    k('v_add_u32 v6, s50, v6')
    k('v_and_b32 v4, 15, v1')
    k('v_lshlrev_b32 v7, 3, v4')
    k('v_lshl_add_u32 v7, v3, 4, v7')
    k(f'v_add_u32 v7, {UO+128-120}, v7')
    k('v_add_u32 v7, s50, v7')
    k('v_lshlrev_b32 v8, 3, v4')
    k('v_lshl_add_u32 v8, v3, 1, v8')
    k(f'v_add_u32 v8, {UO+128}, v8')
    k('v_add_u32 v8, s50, v8')
    k('v_subrev_u32 v9, 16, v1')
    k('v_add_u32 v10, 47, v1')
    k('v_cmp_gt_u32 vcc, 16, v1')
    k('v_cndmask_b32 v9, v9, v10, vcc')
    k('v_mov_b32 v10, 63')
    k('v_cmp_eq_u32 vcc, 0, v1')
    k('v_cndmask_b32 v9, v9, v10, vcc')
    k('v_lshlrev_b32 v9, 2, v9')
    k('v_and_b32 v5, 1, v3')
    k('v_lshlrev_b32 v10, 9, v5')
    k('v_lshl_add_u32 v10, v4, 5, v10')
    k('v_lshrrev_b32 v5, 1, v3')
    k('v_lshl_add_u32 v10, v5, 4, v10')
    k('v_cmp_eq_u32 s[56:57], 63, v1')
    k('s_waitcnt vmcnt(0) lgkmcnt(0)')
    if STAMPS: k('s_memtime s[62:63]'); k('s_waitcnt lgkmcnt(0)')
    k('s_bitcmp1_b32 s29, 0')
    k('s_cselect_b32 s54, 0, 16')
    k('s_lshl_b32 s55, s55, s54')
    k('s_and_b32 s55, s55, 0xffff0000')
    lq=LQ(k)
    ACC=64
    Z=lambda rho,T: ACC+4*(rho*8+T)
    items=[]
    for i in range(8):
        for rho in range(4):
            items.append((-1+i,rho)); items.append((14-i,rho))
    NB=4; BB=16
    def bread(n):
        e,rho=items[n]; r=BB+4*(n%NB); o=rho*1152+64*(e+1)
        lq.issue(f'ds_read_b64 v[{r}:{r+1}], v7 offset:{o}',('b',n))
        lq.issue(f'ds_read_b64 v[{r+2}:{r+3}], v7 offset:{o+8}',('b',n))
    def aread(jj):
        for h in range(2):
            lq.issue(f'ds_read_b64_tr_b16 a[{4*jj+2*h}:{4*jj+2*h+1}], v6 offset:{256*jj+32*(1-h)}',('a',jj))
    bread(0)
    for jj in (1,3,5,7,9,11,13,15,0): aread(jj)
    bread(1); bread(2)
    pend_a=[2,4,6,8,10,12,14]
    for n,(e,rho) in enumerate(items):
        r=BB+4*(n%NB)
        first=True
        for T in range(8):
            jj=2*T-e
            if jj<0 or jj>15: continue
            lq.need([('b',n),('a',jj)])
            z=Z(rho,T)
            k(f'v_mfma_f32_16x16x32_bf16 v[{z}:{z+3}], a[{4*jj}:{4*jj+3}], v[{r}:{r+3}], {"0" if e==-1 else f"v[{z}:{z+3}]"}')
            if first:
                first=False
                if n+3<len(items): bread(n+3)
            elif pend_a and n>=0: aread(pend_a.pop(0))
    if STAMPS: k('s_memtime s[64:65]'); k('s_waitcnt lgkmcnt(0)')
    lq.drain()
    for T in range(8):
        for r in range(4): k(f'ds_read_u16_d16_hi v{32+4*T+r}, v8 offset:{r*1152+T*128}')
    for T in range(8):
        z0,z1,z2,z3=[Z(r,T) for r in range(4)]
        k(f'v_add_f32 v{z1+3}, v{z1+3}, v{z2+2}')
        k(f'v_add_f32 v{z1+3}, v{z1+3}, v{z3+1}')
        k(f'v_add_f32 v{z2+3}, v{z2+3}, v{z3+2}')
    k('v_mov_b32 v11, 0')
    for T in range(7,-1,-1):
        for rho in (1,2,3):
            prev=f'v{Z(rho,T-1)+3}' if T else 'v11'
            k(f'v_cndmask_b32 v{Z(rho,T)+3}, v{Z(rho,T)+3}, {prev}, s[56:57]')
    for T in range(8):
        for rho in (1,2,3): k(f'ds_bpermute_b32 v{Z(rho,T)+3}, v9, v{Z(rho,T)+3}')
    for T in range(8):
        z0,z1,z2,z3=[Z(r,T) for r in range(4)]
        k(f'v_add_f32 v{z0+1}, v{z0+1}, v{z1}')
        k(f'v_add_f32 v{z0+2}, v{z0+2}, v{z1+1}')
        k(f'v_add_f32 v{z0+3}, v{z0+3}, v{z1+2}')
        k(f'v_add_f32 v{z0+2}, v{z0+2}, v{z2}')
        k(f'v_add_f32 v{z0+3}, v{z0+3}, v{z2+1}')
        k(f'v_add_f32 v{z0+3}, v{z0+3}, v{z3}')
    k('s_waitcnt lgkmcnt(0)')
    for T in range(8):
        z0=Z(0,T)
        for r in range(4): k(f'v_fmac_f32 v{z0+r}, s55, v{32+4*T+r}')
        for r in range(3): k(f'v_add_f32 v{z0+r}, v{z0+r}, v{Z(r+1,T)+3}')
    for T in range(0,8,2):
        o=16+4*(T//2); a=Z(0,T); b=Z(0,T+1)
        k(f'v_cvt_pk_bf16_f32 v{o}, v{a}, v{a+1}')
        k(f'v_cvt_pk_bf16_f32 v{o+1}, v{a+2}, v{a+3}')
        k(f'v_cvt_pk_bf16_f32 v{o+2}, v{b}, v{b+1}')
        k(f'v_cvt_pk_bf16_f32 v{o+3}, v{b+2}, v{b+3}')
        k(f'v_permlane16_swap_b32 v{o}, v{o+2}')
        k(f'v_permlane16_swap_b32 v{o+1}, v{o+3}')
        k(f'buffer_store_dwordx4 v[{o}:{o+3}], v10, s[{S_WS}:{S_WS+3}], s53 offen offset:{T*512} {ST}')
    stamp_out(k,1)
    return finish(k)

G3MAP=(4,8)
def gen_k3():
    c=mkcfg(224,1024,3,7168,'panel',PANEL)
    LDS_RS=c.ring; LDS_CS=c.ring+1024
    k=Kernel('k3_kernel',256,512,c.ring+2048,vgpr=168,agpr=88)
    entry(k)
    srd(k,S_W,'w3',1024*7168)
    tile_map(k,16,*G3MAP)
    k(f's_lshl_b32 s{s_xo}, s{s_rb}, 14')
    k(f's_add_u32 s{s_xo}, s{s_xo}, {WS_X1}')
    k(f's_mul_i32 s{s_wo}, s{s_cb}, 448')
    k(f's_cmp_ge_u32 s{s_wave}, 4')
    k('s_cbranch_scc1 k3_loader')
    c.vxa=6; c.vxa2=8; c.vwa=10; c.vwa2=12; c.acc=32; c.fx=(0,44); c.fw=(16,60)
    compute_setup(k,c)
    for i in range(112): k(f'v_mov_b32 v{c.acc+i}, 0')
    k('v_and_b32 v2, 15, v1')
    cprime(k,3,4)
    k(f's_lshl_b32 s{s_t0}, s{s_cb}, 1')
    k(f's_add_u32 s{s_t0}, s{s_t0}, s{s_wn}')
    k(f's_mul_i32 s{s_t0}, s{s_t0}, 14')
    k('v_and_b32 v5, 7, v2')
    for tp in range(4):
        if tp<3:
            k(f's_add_u32 s{s_t1}, s{s_t0}, {4*tp}')
            k(f'v_add_u32 v18, s{s_t1}, v3')
        else:
            k(f's_add_u32 s{s_t1}, s{s_t0}, 12')
            k('v_lshrrev_b32 v18, 5, v1')
            k(f'v_add_u32 v18, s{s_t1}, v18')
        k('v_and_b32 v19, 7, v18')
        k('v_xor_b32 v19, v19, v5')
        k('v_lshlrev_b32 v19, 4, v19')
        k('v_lshrrev_b32 v18, 3, v18')
        k('v_lshl_add_u32 v19, v18, 18, v19')
        k(f'v_lshl_add_u32 v{28+tp}, v2, 7, v19')
    k('v_bfe_u32 v18, v1, 4, 1')
    k('v_lshl_add_u32 v31, v18, 11, v31')
    k(f's_lshl_b32 s{s_t2}, s{s_rb}, 14')
    k(f's_lshl_b32 s{s_t0}, s{s_wm}, 13')
    k(f's_add_u32 s{s_t2}, s{s_t2}, s{s_t0}')
    k(f's_add_u32 s{s_t2}, s{s_t2}, {WS_H3}')
    k('s_waitcnt lgkmcnt(0)')
    compute_main(k,c)
    ln_gelu_epilogue(k,c,LDS_RS,LDS_CS,1,[28,29,30,31],144,[160,164,6,10,14,32,36],20,s_t2,late=(5,6))
    stamp_out(k,2)
    k('s_endpgm')
    k.label('k3_loader')
    loader_setup(k,c)
    k('v_and_b32 v2, 31, v1')
    k('v_lshrrev_b32 v3, 5, v1')
    k('v_lshlrev_b32 v20, 3, v2')
    k('v_lshl_add_u32 v21, v3, 17, v20')
    k(f's_lshl_b32 s50, s{s_rb}, 10')
    k(f's_lshl_b32 s51, s{s_lw}, 8')
    k('s_add_u32 s50, s50, s51')
    k(f's_add_u32 s50, s50, {WS_ST3}')
    k(f'v_add_u32 v20, s51, v20')
    k(f'v_add_u32 v20, {LDS_RS}, v20')
    k('v_lshlrev_b32 v22, 2, v1')
    k(f's_mul_i32 s51, s{s_lw}, 224')
    k(f's_mul_i32 s52, s{s_cb}, 896')
    k('s_add_u32 s52, s52, s51')
    k(f's_add_u32 s52, s52, {WS_CS3}')
    k(f's_add_u32 s53, s52, {3584*4}')
    k(f's_add_u32 s51, s51, {LDS_CS}')
    k('v_add_u32 v23, s51, v22')
    def tail(s):
        if s==c.S-c.R:
            for p in range(8):
                k(f'buffer_load_dwordx2 v[{32+2*p}:{33+2*p}], v21, s[{S_WS}:{S_WS+3}], s50 offen')
                if p<7: k('s_add_u32 s50, s50, 16384')
            k(f'buffer_load_dword v48, v22, s[{S_WS}:{S_WS+3}], s52 offen')
            k(f'buffer_load_dword v49, v22, s[{S_WS}:{S_WS+3}], s53 offen')
            return 10
        if s==c.S-2:
            k('s_waitcnt vmcnt(0)')
            for p in range(1,8): k(f'v_pk_add_f32 v[32:33], v[32:33], v[{32+2*p}:{33+2*p}]')
            k('v_mov_b32 v34, v32'); k('v_mov_b32 v35, v33')
            k('v_permlane32_swap_b32 v32, v34')
            k('v_permlane32_swap_b32 v33, v35')
            k('v_pk_add_f32 v[32:33], v[32:33], v[34:35]')
            ln_finish(k,32,33,34,36,38)
            k('v_mul_f32 v39, v36, v38')
            k('v_sub_f32 v39, 0, v39')
            k('ds_write_b64 v20, v[38:39]')
            k('v_add_f32 v48, v48, v49')
            k('ds_write_b32 v23, v48')
        return 0
    c.tail=tail
    k('s_waitcnt lgkmcnt(0)')
    loader_main(k,c)
    return finish(k)

def gen_k4():
    c=mkcfg(64,3584,5,2048,'panel',PANEL)
    LDS_Y=c.ring
    k=Kernel('k4_kernel',256,512,c.ring+16384,vgpr=192,agpr=48)
    entry(k)
    srd(k,S_W,'w4',3584*2048)
    srd(k,S_X,'q',2048*2048)
    srd(k,S_A,'out',2048*2048)
    tile_map(k,16,4,8)
    k(f's_lshl_b32 s{s_xo}, s{s_rb}, 14')
    k(f's_add_u32 s{s_xo}, s{s_xo}, {WS_H3}')
    k(f's_lshl_b32 s{s_wo}, s{s_cb}, 7')
    k(f's_cmp_ge_u32 s{s_wave}, 4')
    k('s_cbranch_scc1 k4_loader')
    c.vxa=6; c.vxa2=8; c.vwa=10; c.vwa2=12; c.acc=32; c.fx=(0,24); c.fw=(16,40)
    k(f's_lshr_b32 s{s_wm}, s{s_wave}, 1')
    k(f's_and_b32 s{s_wn}, s{s_wave}, 1')
    k('v_and_b32 v2, 15, v1')
    cprime(k,3,4)
    k('v_lshlrev_b32 v4, 11, v2')
    k('v_lshl_add_u32 v18, v3, 4, v4')
    k('v_lshlrev_b32 v19, 3, v2')
    k(f's_lshl_b32 s{s_t0}, s{s_rb}, 1')
    k(f's_add_u32 s{s_t0}, s{s_t0}, s{s_wm}')
    k(f's_lshl_b32 s50, s{s_t0}, 17')
    k(f's_lshl_b32 s51, s{s_cb}, 7')
    k('s_add_u32 s50, s50, s51')
    k(f's_lshl_b32 s51, s{s_wn}, 6')
    k('s_add_u32 s50, s50, s51')
    k(f's_lshl_b32 s51, s{s_t0}, 9')
    k(f's_add_u32 s52, s51, {WS_ST1}')
    k(f's_lshl_b32 s54, s{s_cb}, 18')
    k(f's_lshl_b32 s51, s{s_t0}, 13')
    k('s_add_u32 s54, s54, s51')
    k(f's_add_u32 s54, s54, {WS_X1}')
    k(f's_lshl_b32 s51, s{s_wn}, 2')
    k('v_add_u32 v3, s51, v3')
    k('v_and_b32 v4, 7, v2')
    k('v_xor_b32 v3, v3, v4')
    k('v_lshlrev_b32 v3, 4, v3')
    k('v_lshl_add_u32 v28, v2, 7, v3')
    k('v_lshrrev_b32 v3, 3, v1')
    k('v_and_b32 v4, 7, v1')
    k('v_lshlrev_b32 v4, 4, v4')
    k('v_lshl_add_u32 v29, v3, 12, v4')
    k(f's_lshl_b32 s55, s{s_cb}, 18')
    k(f's_lshl_b32 s51, s{s_wn}, 17')
    k('s_add_u32 s55, s55, s51')
    k(f's_lshl_b32 s51, s{s_t0}, 7')
    k('s_add_u32 s55, s55, s51')
    k(f's_add_u32 s55, s55, {WS_Y2T}')
    k(f's_lshl_b32 s56, s{s_wave}, 12')
    k(f's_add_u32 s56, s56, {LDS_Y}')
    k('s_waitcnt lgkmcnt(0)')
    R1=64; RX=80; XF=96; PF=128; YR=160
    for mt in range(4):
        k(f's_add_u32 s51, s54, {mt*2048}')
        k(f'buffer_load_dwordx4 v[{R1+4*mt}:{R1+4*mt+3}], v28, s[{S_WS}:{S_WS+3}], s51 offen')
    for mt in range(4): k(f'buffer_load_dwordx2 v[{20+2*mt}:{21+2*mt}], v19, s[{S_WS}:{S_WS+3}], s52 offen offset:{mt*128}')
    for mt in range(4):
        k(f's_add_u32 s51, s50, {mt*32768}')
        k(f'buffer_load_dwordx4 v[{RX+4*mt}:{RX+4*mt+3}], v18, s[{S_X}:{S_X+3}], s51 offen')
    for i in range(4):
        k(f's_add_u32 m0, s56, {i*1024}')
        k(f'buffer_load_dwordx4 v29, s[{S_WS}:{S_WS+3}], s55 offen lds')
        if i<3: k('s_add_u32 s55, s55, 32768')
    compute_setup(k,c)
    k('v_lshrrev_b32 v3, 2, v1')
    k('v_and_b32 v4, 3, v1')
    k('v_lshlrev_b32 v4, 3, v4')
    k('v_lshl_add_u32 v3, v3, 7, v4')
    k('v_add_u32 v30, s56, v3')
    k('s_waitcnt vmcnt(12)')
    for mt in range(4):
        r=R1+4*mt
        k(f'v_permlane16_swap_b32 v{r}, v{r+2}')
        k(f'v_permlane16_swap_b32 v{r+1}, v{r+3}')
    for mt in range(4):
        for d in range(4): unp(k,c.acc+8*mt+2*d,R1+4*mt+d)
    k('s_waitcnt vmcnt(4)')
    for mt in range(4):
        r=RX+4*mt
        k(f'v_permlane16_swap_b32 v{r}, v{r+2}')
        k(f'v_permlane16_swap_b32 v{r+1}, v{r+3}')
        k(f'v_mul_f32 v{20+2*mt}, v{20+2*mt}, v{21+2*mt}')
        k(f'v_sub_f32 v{20+2*mt}, 0, v{20+2*mt}')
    for mt in range(4):
        rs=20+2*mt
        for d in range(4): unp(k,XF+8*mt+2*d,RX+4*mt+d)
        for d in range(4):
            x=XF+8*mt+2*d; p=PF+8*mt+2*d
            k(f'v_pk_fma_f32 v[{p}:{p+1}], v[{x}:{x+1}], v[{rs}:{rs+1}], v[{rs}:{rs+1}] op_sel:[0,1,0] op_sel_hi:[1,1,0]')
    k('s_waitcnt vmcnt(0)')
    for mt in range(4):
        for t in range(2):
            r=YR+4*mt+2*t
            k(f'ds_read_b64_tr_b16 v[{r}:{r+1}], v30 offset:{t*2048+mt*32}')
    k('s_waitcnt lgkmcnt(0)')
    for mt in range(4):
        for d in range(4):
            unp(k,R1+2*d,YR+4*mt+d)
        for d in range(4):
            p=PF+8*mt+2*d
            k(f'v_pk_mul_f32 v[{p}:{p+1}], v[{p}:{p+1}], v[{R1+2*d}:{R1+2*d+1}]')
    compute_main(k,c)
    k(f's_mov_b32 s44, {f2u(-LOG2E):#x}'); k(f's_mov_b32 s45, {f2u(-LOG2E):#x}')
    k('s_mov_b32 s48, 1.0'); k('s_mov_b32 s49, 1.0')
    for mt in range(4):
        a=c.acc+8*mt; t=R1+8*(mt%2); o=RX+4*mt
        for d in range(4): k(f'v_pk_mul_f32 v[{t+2*d}:{t+2*d+1}], v[{a+2*d}:{a+2*d+1}], s[44:45]')
        for d in range(8): k(f'v_exp_f32 v{t+d}, v{t+d}')
        for d in range(4): k(f'v_pk_add_f32 v[{t+2*d}:{t+2*d+1}], v[{t+2*d}:{t+2*d+1}], s[48:49]')
        for d in range(8): k(f'v_rcp_f32 v{t+d}, v{t+d}')
        for d in range(4): k(f'v_pk_mul_f32 v[{t+2*d}:{t+2*d+1}], v[{t+2*d}:{t+2*d+1}], v[{a+2*d}:{a+2*d+1}]')
        for d in range(4):
            x=XF+8*mt+2*d; p=PF+8*mt+2*d
            k(f'v_pk_fma_f32 v[{t+2*d}:{t+2*d+1}], v[{t+2*d}:{t+2*d+1}], v[{p}:{p+1}], v[{x}:{x+1}]')
        for d in range(4): k(f'v_cvt_pk_bf16_f32 v{o+d}, v{t+2*d}, v{t+2*d+1}')
        k(f's_add_u32 s51, s50, {mt*32768}')
        k(f'v_permlane16_swap_b32 v{o}, v{o+2}')
        k(f'v_permlane16_swap_b32 v{o+1}, v{o+3}')
        k(f'buffer_store_dwordx4 v[{o}:{o+3}], v18, s[{S_A}:{S_A+3}], s51 offen {ST}')
    stamp_out(k,3)
    k('s_endpgm')
    k.label('k4_loader')
    loader_setup(k,c)
    k('s_waitcnt lgkmcnt(0)')
    loader_main(k,c)
    return finish(k)
```

```python
import sys, math, struct
from asmlib import *
import hazard

KA=dict(q=0,k=8,v=16,shk=24,ssmk=32,ssmD=40,bx=48,w1=56,w2=64,w3=72,w4=80,out=88,dbg=96,ws=104)
PANEL=2048*128
PANEL_H=(2048+16)*128
WS_H  =0x0000000
WS_X1 =0x0500000
WS_H3 =0x0A00000
WS_KVT=0x1900000
WS_Y2T=0x1E00000
WS_ST1=0x2300000
WS_ST3=0x2310000
WS_CS3=0x2360000
WS_STAMP=0x8000000
WS_SIZE=0x10000000
ST='sc1'
STAMPS=False
DBGT=False

def f2u(x): return struct.unpack('<I',struct.pack('<f',x))[0]
LOG2E=1.4426950408889634
GA=-2.0*math.sqrt(2.0/math.pi)*LOG2E
GB=GA*0.044715

class G:
    def __init__(self, **kw): self.__dict__.update(kw)

S_WS=4; S_X=8; S_W=12; S_A=16; S_B=20; S_C=24
s_xo=30; s_wo=31; s_cnt=32; s_wave=33; s_rb=34; s_cb=35; s_t0=36; s_t1=37; s_t2=38; s_t3=39
s_lw=40; s_lx=41; s_lwb=42; s_wm=40; s_wn=41
s_c0=44

def srd(k, base, arg, size):
    k(f's_load_dwordx2 s[{base}:{base+1}], s[0:1], {KA[arg]}')
    k(f's_mov_b32 s{base+2}, {size}')
    k(f's_mov_b32 s{base+3}, 0x20000')

def wswz_bits(Nt): return {64:[(1,0),(3,1)], 128:[(0,0),(1,1),(3,2)], 224:[(3,0)]}[Nt]
def emit_f(k, dst, krow, tmp, Nt):
    first=True
    if Nt==128:
        k(f'v_and_b32 v{dst}, 3, v{krow}')
        k(f'v_bfe_u32 v{tmp}, v{krow}, 3, 1')
        k(f'v_lshl_or_b32 v{dst}, v{tmp}, 2, v{dst}')
        return
    for sb,db in wswz_bits(Nt):
        if first:
            k(f'v_bfe_u32 v{dst}, v{krow}, {sb}, 1'); assert db==0
            first=False
        else:
            k(f'v_bfe_u32 v{tmp}, v{krow}, {sb}, 1')
            k(f'v_lshl_or_b32 v{dst}, v{tmp}, {db}, v{dst}')

def mkcfg(Nt,K,R,wpitch,xmode,xadv):
    c=G(Nt=Nt,K=K,R=R,wpitch=wpitch,xmode=xmode,xadv=xadv)
    c.NT=Nt//32; c.S=K//64
    c.stage=16384+64*Nt*2
    c.nwb={64:2,128:4,224:2}[Nt]
    c.split={64:73728,128:65536,224:90112}[Nt]
    c.ring=R*c.stage
    c.sX=S_X if xmode=='rows' else S_WS
    c.aux=None
    c.bar_at={64:1,128:3,224:4}[Nt]
    return c

def loader_setup(k,c):
    L=1; t0,t1,t2,t3=2,3,4,5
    Nt=c.Nt; CPR=Nt//8; NWL=Nt//32
    k(f's_sub_u32 s{s_lw}, s{s_wave}, 4')
    k(f's_lshl_b32 s{s_lx}, s{s_lw}, 12')
    if c.xmode=='rows':
        k(f'v_lshrrev_b32 v{t0}, 3, v{L}')
        k(f'v_and_b32 v{t1}, 7, v{L}')
        k(f'v_xor_b32 v{t1}, v{t1}, v{t0}')
        k(f'v_lshlrev_b32 v{t1}, 4, v{t1}')
        k(f's_lshl_b32 s{s_t0}, s{s_lw}, 5')
        k(f'v_add_u32 v{t0}, s{s_t0}, v{t0}')
        k(f'v_lshl_add_u32 v6, v{t0}, 11, v{t1}')
        for i in range(1,4): k(f'v_add_u32 v{6+i}, {i*8*2048-i*1024}, v6')
    else:
        k(f'v_lshl_add_u32 v6, v{L}, 4, s{s_lx}')
    k(f's_mul_i32 s{s_t0}, s{s_lw}, {NWL*64}')
    k(f's_mov_b32 s{s_t1}, {c.wpitch}')
    for i in range(NWL):
        k(f'v_add_u32 v{t0}, s{s_t0}, v{L}')
        if i: k(f'v_add_u32 v{t0}, {i*64}, v{t0}')
        if CPR==28:
            k(f'v_mul_u32_u24 v{t1}, 2341, v{t0}')
            k(f'v_lshrrev_b32 v{t1}, 16, v{t1}')
            k(f'v_mul_u32_u24 v{t2}, 28, v{t1}')
            k(f'v_sub_u32 v{t0}, v{t0}, v{t2}')
        else:
            sh={8:3,16:4}[CPR]
            k(f'v_lshrrev_b32 v{t1}, {sh}, v{t0}')
            k(f'v_and_b32 v{t0}, {CPR-1}, v{t0}')
        emit_f(k,t2,t1,t3,Nt)
        k(f'v_lshlrev_b32 v{t2}, 1, v{t2}')
        k(f'v_xor_b32 v{t0}, v{t0}, v{t2}')
        k(f'v_mul_lo_u32 v{t1}, v{t1}, s{s_t1}')
        k(f'v_lshl_add_u32 v{10+i}, v{t0}, 4, v{t1}')
        if i%4: k(f'v_subrev_u32 v{10+i}, {(i%4)*1024}, v{10+i}')
    k(f's_mul_i32 s{s_lwb}, s{s_lw}, {NWL*1024}')
    k(f's_add_u32 s{s_lwb}, s{s_lwb}, 16384')

def loader_issue(k,c,slot):
    NWL=c.Nt//32; base=slot*c.stage
    k(f's_add_u32 m0, s{s_lx}, {base}')
    for i in range(4):
        v=6+i if c.xmode=='rows' else 6
        k(f'buffer_load_dwordx4 v{v}, s[{c.sX}:{c.sX+3}], s{s_xo} offen offset:{i*1024} lds')
    for i in range(NWL):
        if i%4==0: k(f's_add_u32 m0, s{s_lwb}, {base+i*1024}')
        k(f'buffer_load_dwordx4 v{10+i}, s[{S_W}:{S_W+3}], s{s_wo} offen offset:{(i%4)*1024} lds')
    k(f's_add_u32 s{s_xo}, s{s_xo}, {c.xadv}')
    k(f's_add_u32 s{s_wo}, s{s_wo}, {64*c.wpitch}')

def loader_main(k,c):
    S=c.S; R=c.R; per=4+c.Nt//32
    aux=c.aux or (lambda slot: None)
    loader_issue(k,c,0); loader_issue(k,c,1)
    k(f's_waitcnt vmcnt({per})')
    k('s_barrier')
    for s in range(2,R): loader_issue(k,c,s)
    aux(0)
    k(f's_waitcnt vmcnt({(R-2)*per}) lgkmcnt(0)')
    nloop=(S-R)//R
    def it(s, steady):
        k('s_barrier')
        if steady or s+R<S: loader_issue(k,c,s%R)
        if steady or s+1<S: aux((s+1)%R)
        if steady: k(f's_waitcnt vmcnt({(R-2)*per}) lgkmcnt(0)')
        else:
            extra=c.tail(s) if getattr(c,'tail',None) else 0
            last=min(s+R,S-1)
            if s+2<=S-1: k(f's_waitcnt vmcnt({(last-(s+2))*per+extra}) lgkmcnt(0)')
            else: k('s_waitcnt lgkmcnt(0)')
    k(f's_mov_b32 s{s_cnt}, {nloop}')
    Lb=k.newlabel('ld'); k('.p2align 3'); k.label(Lb)
    for s in range(R): it(s,True)
    k(f's_sub_u32 s{s_cnt}, s{s_cnt}, 1')
    k(f's_cmp_lg_u32 s{s_cnt}, 0')
    k(f's_cbranch_scc1 {Lb}')
    for s in range(nloop*R,S): it(s,False)

def compute_setup(k,c):
    L=1; t0,t1,t2,t3=2,3,4,5
    Nt=c.Nt; NT=c.NT; P=Nt*2
    k(f's_lshr_b32 s{s_wm}, s{s_wave}, 1')
    k(f's_and_b32 s{s_wn}, s{s_wave}, 1')
    k(f'v_and_b32 v{t0}, 15, v{L}')
    k(f'v_lshrrev_b32 v{t1}, 4, v{L}')
    k(f'v_and_b32 v{t2}, 7, v{L}')
    k(f'v_xor_b32 v{t2}, v{t2}, v{t1}')
    k(f'v_lshlrev_b32 v{t2}, 4, v{t2}')
    k(f'v_lshl_add_u32 v{t2}, v{t0}, 7, v{t2}')
    k(f's_lshl_b32 s{s_t0}, s{s_wm}, 13')
    k(f'v_add_u32 v{c.vxa}, s{s_t0}, v{t2}')
    k(f'v_xor_b32 v{c.vxa+1}, 64, v{c.vxa}')
    k(f'v_bfe_u32 v{t0}, v{L}, 2, 2')
    k(f'v_lshl_add_u32 v{t0}, v{t1}, 3, v{t0}')
    emit_f(k,t2,t0,t3,Nt)
    k(f'v_mul_u32_u24 v{t0}, {P}, v{t0}')
    k(f'v_and_b32 v{t1}, 3, v{L}')
    k(f'v_lshl_add_u32 v{t0}, v{t1}, 3, v{t0}')
    k(f'v_add_u32 v{t0}, 16384, v{t0}')
    k(f's_mul_i32 s{s_t0}, s{s_wn}, {NT}')
    for b in range(c.nwb):
        k(f's_add_u32 s{s_t1}, s{s_t0}, {b}')
        k(f'v_xor_b32 v{t1}, s{s_t1}, v{t2}')
        k(f'v_lshl_add_u32 v{c.vwa+b}, v{t1}, 5, v{t0}')
    for i in range(2): k(f'v_add_u32 v{c.vxa2+i}, {c.split}, v{c.vxa+i}')
    for b in range(c.nwb): k(f'v_add_u32 v{c.vwa2+b}, {c.split}, v{c.vwa+b}')

def frag_reads(c,slot,ks,fset):
    P=c.Nt*2; so=slot*c.stage
    hi=so>=c.split; ofs=so-(c.split if hi else 0)
    xa=(c.vxa2 if hi else c.vxa)+ks; wa=(c.vwa2 if hi else c.vwa)
    xs=[];ws=[]
    for mt in range(4):
        r=c.fx[fset]+4*mt
        xs.append((f'ds_read_b128 a[{r}:{r+3}], v{xa} offset:{ofs+mt*2048}',('x',fset,mt)))
    for t in range(c.NT):
        r=c.fw[fset]+4*t; b=t%c.nwb
        o=ofs+ks*32*P+(t-b)*32
        assert o+4*P<65536
        ws.append([(f'ds_read_b64_tr_b16 a[{r}:{r+1}], v{wa+b} offset:{o}',('w',fset,t)),
                   (f'ds_read_b64_tr_b16 a[{r+2}:{r+3}], v{wa+b} offset:{o+4*P}',('w',fset,t))])
    out=ws[0]+xs
    for w in ws[1:]: out+=w
    return out

def mfmas(c,fset):
    out=[]
    for t in range(c.NT):
        for mt in range(4):
            a=c.acc+4*(mt*c.NT+t); w=c.fw[fset]+4*t; x=c.fx[fset]+4*mt
            out.append((f'v_mfma_f32_16x16x32_bf16 v[{a}:{a+3}], a[{w}:{w+3}], a[{x}:{x+3}], v[{a}:{a+3}]',[('w',fset,t),('x',fset,mt)]))
    return out

class LQ:
    def __init__(self,k): self.k=k; self.q=[]
    def issue(self,ins,tag): self.k(ins); self.q.append(tag)
    def need(self,tags):
        idx=-1
        for i,t in enumerate(self.q):
            if t in tags: idx=i
        if idx>=0:
            n=len(self.q)-1-idx
            n=min(n,15)
            self.k(f's_waitcnt lgkmcnt({n})')
            self.q=self.q[len(self.q)-n:] if n else []
    def drain(self):
        if self.q: self.k('s_waitcnt lgkmcnt(0)')
        self.q=[]

def phase(k,lq,mf,rd,bar_at=None,pre_bar=None):
    ri=0; n=len(mf)
    start=0 if bar_at is None else bar_at
    slots=n-start
    for i,(m,tags) in enumerate(mf):
        lq.need(tags); k(m)
        if bar_at is not None and i==bar_at:
            lq.drain()
            if pre_bar: k(pre_bar)
            k('s_barrier')
        if i>=start:
            left=len(rd)-ri; rem=n-i
            cnt=1 if left<=rem else -(-left//rem)
            for _ in range(cnt):
                if ri<len(rd): lq.issue(*rd[ri]); ri+=1
    assert ri==len(rd)

def compute_main(k,c,last_pre_bar=None):
    S=c.S; R=c.R
    lq=LQ(k)
    k('s_barrier')
    if STAMPS: k('s_memtime s[62:63]'); k('s_waitcnt lgkmcnt(0)')
    for r in frag_reads(c,0,0,0): lq.issue(*r)
    q0=list(lq.q)
    def stage(s,last=False):
        slot=s%R
        phase(k,lq,mfmas(c,0),frag_reads(c,slot,1,1))
        phase(k,lq,mfmas(c,1),[] if last else frag_reads(c,(s+1)%R,0,0),bar_at=c.bar_at,pre_bar=last_pre_bar if last else None)
        if not last: assert lq.q==q0,(lq.q,q0)
    nloop=(S-1)//R
    k(f's_mov_b32 s{s_cnt}, {nloop}')
    Lb=k.newlabel('cm'); k('.p2align 3'); k.label(Lb)
    for s in range(R): stage(s)
    k(f's_sub_u32 s{s_cnt}, s{s_cnt}, 1')
    k(f's_cmp_lg_u32 s{s_cnt}, 0')
    k(f's_cbranch_scc1 {Lb}')
    for s in range(nloop*R,S): stage(s,s==S-1)
    if STAMPS: k('s_memtime s[64:65]'); k('s_waitcnt lgkmcnt(0)')

def tile_map(k, ntn, xr, xc, idx='s17'):
    nxc=ntn//xc
    k(f's_lshr_b32 s{s_t0}, s28, {int(math.log2(nxc))}')
    k(f's_mul_i32 s{s_t0}, s{s_t0}, {xr}')
    k(f's_lshr_b32 s{s_t1}, s29, {int(math.log2(xc))}')
    k(f's_add_u32 s{s_rb}, s{s_t0}, s{s_t1}')
    k(f's_and_b32 s{s_t0}, s28, {nxc-1}')
    k(f's_mul_i32 s{s_t0}, s{s_t0}, {xc}')
    k(f's_and_b32 s{s_t1}, s29, {xc-1}')
    k(f's_add_u32 s{s_cb}, s{s_t0}, s{s_t1}')

def entry(k):
    k('s_cmp_ge_u32 s2, 256')
    k(f's_cbranch_scc1 {k.name}_end')
    if STAMPS: k('s_memtime s[60:61]'); k('s_memrealtime s[70:71]')
    srd(k,S_WS,'ws',WS_SIZE)
    k('v_lshrrev_b32 v2, 6, v0')
    k('v_and_b32 v1, 63, v0')
    k(f'v_readfirstlane_b32 s{s_wave}, v2')
    k('s_and_b32 s28, s2, 7')
    k('s_lshr_b32 s29, s2, 3')
    if DBGT:
        k('s_memrealtime s[70:71]')
        k('s_memtime s[60:61]')
        k(f's_load_dwordx2 s[76:77], s[0:1], {KA["dbg"]}')

def stamp_out(k,slot,wavesel=0):
    if DBGT:
        k('s_waitcnt vmcnt(0)')
        k('s_memrealtime s[72:73]')
        k('s_memtime s[62:63]')
        k('s_waitcnt lgkmcnt(0)')
        k(f's_cmp_lg_u32 s{s_wave}, {wavesel}')
        k(f's_cbranch_scc1 {k.name}_end')
        k('s_and_b32 s74, s2, 127')
        k('s_cmp_lg_u32 s74, 3')
        k(f's_cbranch_scc1 {k.name}_end')
        k(f's_add_u32 s76, s76, {(3-slot)*512}')
        k('s_addc_u32 s77, s77, 0')
        k('s_mov_b32 s78, 256'); k('s_mov_b32 s79, 0x20000')
        k('s_lshr_b32 s74, s2, 7')
        k('s_lshl_b32 s74, s74, 3')
        k('v_mov_b32 v20, s70'); k('v_mov_b32 v21, s72'); k('v_mov_b32 v2, 0')
        k('s_mov_b64 exec, 1')
        k(f'buffer_store_dwordx2 v[20:21], v2, s[76:79], s74 offen offset:{slot*16}')
        return
    if not STAMPS: return
    k('s_memtime s[66:67]')
    k('s_waitcnt vmcnt(0)')
    k('s_memtime s[68:69]')
    k('s_memrealtime s[72:73]')
    k('s_waitcnt lgkmcnt(0)')
    k(f's_cmp_lg_u32 s{s_wave}, {wavesel}')
    k(f's_cbranch_scc1 {k.name}_end')
    k(f'''s_sub_u32 s62, s62, s60
    s_sub_u32 s64, s64, s60
    s_sub_u32 s66, s66, s60
    s_sub_u32 s68, s68, s60
    v_mov_b32 v20, s62
    v_mov_b32 v21, s64
    v_mov_b32 v22, s66
    v_mov_b32 v23, s68
    v_mov_b32 v24, s70
    v_mov_b32 v25, s72
    v_mov_b32 v26, 0
    v_mov_b32 v27, 0
    s_lshl_b32 s74, s2, 5
    s_add_u32 s74, s74, {WS_STAMP+slot*8192}
    v_mov_b32 v2, 0
    s_mov_b64 exec, 1
    buffer_store_dwordx4 v[20:23], v2, s[4:7], s74 offen
    buffer_store_dwordx4 v[24:27], v2, s[4:7], s74 offen offset:16''')

def rbf(k,dst,src):
    k(f'v_cvt_pk_bf16_f32 v{dst}, v{src}, v{src}')
    k(f'v_and_b32 v{dst}, 0xffff0000, v{dst}')

def ln_finish(k, vs, vq, t, out_m, out_rs):
    k(f'v_mul_f32 v{vs}, {f2u(1/1024):#x}, v{vs}')
    k(f'v_mul_f32 v{vq}, {f2u(1/1024):#x}, v{vq}')
    k(f'v_fma_f32 v{vq}, -v{vs}, v{vs}, v{vq}')
    k(f'v_max_f32 v{vq}, 0, v{vq}')
    rbf(k,out_m,vs)
    rbf(k,t,vq)
    k(f'v_add_f32 v{t}, {f2u(1e-5):#x}, v{t}')
    rbf(k,t,t)
    k(f'v_sqrt_f32 v{t}, v{t}')
    rbf(k,t,t)
    k(f'v_rcp_f32 v{out_rs}, v{t}')

def gelu_pairs(k, xs, tmp):
    n=len(xs)
    T=[tmp+2*i for i in range(n)]
    for x,t in zip(xs,T): k(f'v_pk_mul_f32 v[{t}:{t+1}], v[{x}:{x+1}], v[{x}:{x+1}]')
    for x,t in zip(xs,T): k(f'v_pk_fma_f32 v[{t}:{t+1}], v[{t}:{t+1}], s[44:45], v[{V_GA}:{V_GA+1}]')
    for x,t in zip(xs,T): k(f'v_pk_mul_f32 v[{t}:{t+1}], v[{t}:{t+1}], v[{x}:{x+1}]')
    for t in T:
        k(f'v_exp_f32 v{t}, v{t}'); k(f'v_exp_f32 v{t+1}, v{t+1}')
    for t in T: k(f'v_pk_add_f32 v[{t}:{t+1}], v[{t}:{t+1}], s[48:49]')
    for t in T:
        k(f'v_rcp_f32 v{t}, v{t}'); k(f'v_rcp_f32 v{t+1}, v{t+1}')
    for x,t in zip(xs,T): k(f'v_pk_mul_f32 v[{x}:{x+1}], v[{x}:{x+1}], v[{t}:{t+1}]')
V_GA=2

def gelu_consts(k):
    k(f's_mov_b32 s44, {f2u(GB):#x}'); k(f's_mov_b32 s45, {f2u(GB):#x}')
    k(f's_mov_b32 s48, 1.0'); k('s_mov_b32 s49, 1.0')
    k(f'v_mov_b32 v{V_GA}, {f2u(GA):#x}'); k(f'v_mov_b32 v{V_GA+1}, {f2u(GA):#x}')

def ln_gelu_epilogue(k,c,lds_rs,lds_cs,ncs,addr,tmp,csr,rsr,soff,late=()):
    NT=c.NT
    k('v_and_b32 v4, 15, v1')
    k(f's_lshl_b32 s{s_t0}, s{s_wm}, 9')
    k(f's_add_u32 s{s_t0}, s{s_t0}, {lds_rs}')
    k(f'v_lshl_add_u32 v4, v4, 3, s{s_t0}')
    k('v_lshrrev_b32 v5, 4, v1')
    k(f's_mul_i32 s{s_t0}, s{s_wn}, {NT*64}')
    k(f's_add_u32 s{s_t0}, s{s_t0}, {lds_cs}')
    k(f'v_lshl_add_u32 v5, v5, 4, s{s_t0}')
    for mt in range(4): k(f'ds_read_b64 v[{rsr+2*mt}:{rsr+2*mt+1}], v4 offset:{mt*128}')
    for t in range(NT):
        if t not in late: k(f'ds_read_b128 v[{csr[t]}:{csr[t]+3}], v5 offset:{t*64}')
    for p in range(1,ncs):
        for t in range(NT):
            k(f'ds_read_b128 v[{tmp+4*(t%4)}:{tmp+4*(t%4)+3}], v5 offset:{p*c.Nt*4+t*64}')
            if t%4==3 or t==NT-1:
                k('s_waitcnt lgkmcnt(0)')
                for u in range(t-t%4,t+1):
                    for h in (0,2): k(f'v_pk_add_f32 v[{csr[u]+h}:{csr[u]+h+1}], v[{csr[u]+h}:{csr[u]+h+1}], v[{tmp+4*(u%4)+h}:{tmp+4*(u%4)+h+1}]')
    k('s_waitcnt lgkmcnt(0)')
    gelu_consts(k)
    def pre(tile,t,mt):
        a=c.acc+4*tile; rs=rsr+2*mt
        for h in (0,2):
            k(f'v_pk_mul_f32 v[{tmp+h}:{tmp+h+1}], v[{csr[t]+h}:{csr[t]+h+1}], v[{rs}:{rs+1}] op_sel:[0,1] op_sel_hi:[1,1]')
        for h in (0,2):
            k(f'v_pk_fma_f32 v[{a+h}:{a+h+1}], v[{a+h}:{a+h+1}], v[{rs}:{rs+1}], v[{tmp+h}:{tmp+h+1}] op_sel:[0,0,0] op_sel_hi:[1,0,1]')
    cnt=[0]
    def pair(tA,tB,av,mt_off):
        (tileA,t_a,mt_a),(tileB,t_b,mt_b)=tA,tB
        pre(tileA,t_a,mt_a); pre(tileB,t_b,mt_b)
        a=c.acc+4*tileA; b=c.acc+4*tileB
        gelu_pairs(k,[a,a+2,b,b+2],tmp)
        o=tmp+8+4*(cnt[0]%2); cnt[0]+=1
        k(f'v_cvt_pk_bf16_f32 v{o}, v{a}, v{a+1}')
        k(f'v_cvt_pk_bf16_f32 v{o+1}, v{a+2}, v{a+3}')
        k(f'v_cvt_pk_bf16_f32 v{o+2}, v{b}, v{b+1}')
        k(f'v_cvt_pk_bf16_f32 v{o+3}, v{b+2}, v{b+3}')
        k(f's_add_u32 s{s_t1}, s{soff}, {mt_off*2048}')
        k(f'v_permlane16_swap_b32 v{o}, v{o+2}')
        k(f'v_permlane16_swap_b32 v{o+1}, v{o+3}')
        k(f'buffer_store_dwordx4 v[{o}:{o+3}], v{av}, s[{S_WS}:{S_WS+3}], s{s_t1} offen {ST}')
    for mt in range(4):
        for tp in range(NT//2):
            t=2*tp
            pair((mt*NT+t,t,mt),(mt*NT+t+1,t+1,mt),addr[tp],mt)
            if late and mt==0 and tp==0:
                for u in late: k(f'ds_read_b128 v[{csr[u]}:{csr[u]+3}], v5 offset:{u*64}')
            if late and mt==0 and tp==1: k('s_waitcnt lgkmcnt(0)')
        if NT%2 and mt%2==1:
            t=NT-1
            pair(((mt-1)*NT+t,t,mt-1),(mt*NT+t,t,mt),addr[NT//2],mt-1)

def finish(k):
    k.label(k.name+'_end')
    k('s_endpgm')
    k.lines,n=hazard.fix(k.lines)
    return k

def reduce8_to2(k, a):
    for i in range(4): k(f'v_permlane32_swap_b32 v{a+i}, v{a+4+i}')
    for i in range(4): k(f'v_add_f32 v{a+i}, v{a+i}, v{a+4+i}')
    for i in range(2): k(f'v_permlane16_swap_b32 v{a+i}, v{a+2+i}')
    for i in range(2): k(f'v_add_f32 v{a+i}, v{a+i}, v{a+2+i}')

def gen_k1():
    c=mkcfg(128,1024,4,2048,'rows',128)
    LDS_RS=c.ring; LDS_CS=c.ring+1024
    k=Kernel('k1_kernel',256,512,c.ring+1024+2048,vgpr=192,agpr=64)
    entry(k)
    k('s_cmp_ge_u32 s29, 16')
    k('s_cbranch_scc1 k1_prep')
    srd(k,S_X,'q',2048*2048)
    srd(k,S_W,'w1',1024*2048)
    tile_map(k,8,4,4)
    k(f's_lshl_b32 s{s_xo}, s{s_rb}, 18')
    k(f's_lshl_b32 s{s_wo}, s{s_cb}, 8')
    k(f's_cmp_ge_u32 s{s_wave}, 4')
    k('s_cbranch_scc1 k1_loader')
    c.vxa=6; c.vxa2=8; c.vwa=10; c.vwa2=14; c.acc=32; c.fx=(0,32); c.fw=(16,48)
    compute_setup(k,c)
    for i in range(64): k(f'v_mov_b32 v{c.acc+i}, 0')
    k(f's_lshr_b32 s{s_t0}, s{s_cb}, 2')
    k(f's_add_u32 s{s_t0}, s{s_t0}, 1')
    k(f's_sub_u32 s{s_t1}, 0, s{s_t0}')
    k(f's_bitcmp1_b32 s{s_cb}, 1')
    k(f's_cselect_b32 s{s_t0}, s{s_t1}, s{s_t0}')
    k(f's_add_u32 s{s_t0}, s{s_t0}, 8')
    k('v_and_b32 v2, 15, v1')
    k(f'v_add_u32 v2, s{s_t0}, v2')
    k('v_lshrrev_b32 v3, 4, v1')
    k('v_and_b32 v4, 1, v3')
    k('v_lshrrev_b32 v3, 1, v3')
    k('v_lshl_or_b32 v3, v4, 1, v3')
    k('v_and_b32 v4, 7, v2')
    k('v_xor_b32 v3, v3, v4')
    k('v_lshlrev_b32 v3, 4, v3')
    k('v_lshl_add_u32 v28, v2, 7, v3')
    k('v_xor_b32 v29, 64, v28')
    k(f's_lshl_b32 s{s_t2}, s{s_cb}, 1')
    k(f's_add_u32 s{s_t2}, s{s_t2}, s{s_wn}')
    k(f's_mul_i32 s{s_t2}, s{s_t2}, {PANEL_H}')
    k(f's_lshl_b32 s{s_t0}, s{s_rb}, 14')
    k(f's_add_u32 s{s_t2}, s{s_t2}, s{s_t0}')
    k(f's_lshl_b32 s{s_t0}, s{s_wm}, 13')
    k(f's_add_u32 s{s_t2}, s{s_t2}, s{s_t0}')
    if WS_H: k(f's_add_u32 s{s_t2}, s{s_t2}, {WS_H}')
    k('s_waitcnt lgkmcnt(0)')
    compute_main(k,c)
    k('s_barrier')
    ln_gelu_epilogue(k,c,LDS_RS,LDS_CS,4,[28,29],96,[112,116,120,124],20,s_t2)
    stamp_out(k,0)
    k('s_endpgm')
    k.label('k1_loader')
    loader_setup(k,c)
    k(f'v_lshl_add_u32 v20, v1, 4, s{s_lx}')
    k(f'v_add_u32 v21, {c.split}, v20')
    k('v_lshrrev_b32 v2, 4, v1')
    k('v_and_b32 v3, 15, v1')
    k('v_lshlrev_b32 v4, 1, v2')
    k('v_xor_b32 v3, v3, v4')
    k('v_lshlrev_b32 v3, 4, v3')
    k('v_lshl_add_u32 v3, v2, 8, v3')
    k(f'v_add_u32 v22, s{s_lwb}, v3')
    k('v_xor_b32 v23, 128, v22')
    k(f'v_add_u32 v24, {c.split}, v22')
    k(f'v_add_u32 v25, {c.split}, v23')
    for i in range(16): k(f'v_mov_b32 v{64+i}, 0')
    k('s_mov_b32 s44, 0x3f803f80'); k('s_mov_b32 s45, 0x00003f80'); k('s_mov_b32 s46, 0x3f800000')
    def aux(slot):
        so=slot*c.stage; hi=so>=c.split; ofs=so-(c.split if hi else 0)
        for i in range(4): k(f'ds_read_b128 v[{32+4*i}:{35+4*i}], v{21 if hi else 20} offset:{ofs+1024*i}')
        for i in range(4): k(f'ds_read_b128 v[{48+4*i}:{51+4*i}], v{(24 if hi else 22)+(i>>1)} offset:{ofs+1024*i}')
        k('s_waitcnt lgkmcnt(4)')
        for d in range(4):
            for i in range(4):
                k(f'v_dot2c_f32_bf16 v{64+2*i}, s44, v{32+4*i+d}')
                k(f'v_dot2c_f32_bf16 v{65+2*i}, v{32+4*i+d}, v{32+4*i+d}')
        k('s_waitcnt lgkmcnt(0)')
        for i in range(4):
            for d in range(4):
                k(f'v_dot2c_f32_bf16 v{72+2*d}, s45, v{48+4*i+d}')
                k(f'v_dot2c_f32_bf16 v{73+2*d}, s46, v{48+4*i+d}')
    c.aux=aux
    k('s_waitcnt lgkmcnt(0)')
    loader_main(k,c)
    reduce8_to2(k,72)
    k('v_and_b32 v2, 15, v1')
    k('v_lshrrev_b32 v3, 4, v1')
    k('v_lshlrev_b32 v3, 3, v3')
    k('v_lshl_add_u32 v2, v2, 5, v3')
    k(f's_lshl_b32 s{s_t0}, s{s_lw}, 9')
    k(f's_add_u32 s{s_t0}, s{s_t0}, {LDS_CS}')
    k(f'v_add_u32 v2, s{s_t0}, v2')
    k('ds_write_b64 v2, v[72:73]')
    for m in ('quad_perm:[1,0,3,2]','quad_perm:[2,3,0,1]','row_half_mirror'):
        for i in range(8): k(f'v_add_f32_dpp v{64+i}, v{64+i}, v{64+i} {m} row_mask:0xf bank_mask:0xf')
    k('v_and_b32 v2, 1, v1'); k('v_cmp_eq_u32 vcc, 1, v2')
    for h in range(2):
        k(f'v_cndmask_b32 v{64+h}, v{64+h}, v{66+h}, vcc')
        k(f'v_cndmask_b32 v{68+h}, v{68+h}, v{70+h}, vcc')
    k('v_and_b32 v2, 2, v1'); k('v_cmp_eq_u32 vcc, 2, v2')
    for h in range(2): k(f'v_cndmask_b32 v{64+h}, v{64+h}, v{68+h}, vcc')
    ln_finish(k,64,65,66,32,33)
    k('v_sub_f32 v64, v64, v32')
    k('v_mul_f32 v64, v64, v33')
    k('v_mul_f32 v65, v65, v33')
    k('v_mul_f32 v65, v65, v33')
    rbf(k,64,64); rbf(k,65,65)
    k(f'v_add_f32 v65, {f2u(1e-5):#x}, v65')
    rbf(k,65,65)
    k('v_sqrt_f32 v65, v65')
    rbf(k,65,65)
    k('v_rcp_f32 v65, v65')
    k('v_fma_f32 v64, v32, v33, v64')
    k('v_mul_f32 v34, v33, v65')
    k('v_mul_f32 v35, v64, v65')
    k('v_sub_f32 v35, 0, v35')
    k('v_and_b32 v2, 3, v1')
    k('v_lshrrev_b32 v3, 3, v1')
    k('v_lshl_add_u32 v2, v2, 3, v3')
    k(f's_lshl_b32 s{s_t0}, s{s_lw}, 5')
    k(f'v_add_u32 v2, s{s_t0}, v2')
    k('v_lshlrev_b32 v2, 3, v2')
    k(f'v_add_u32 v3, {LDS_RS}, v2')
    k('ds_write_b64 v3, v[34:35]')
    k(f's_cmp_lg_u32 s{s_cb}, 0')
    k('s_cbranch_scc1 k1_nost')
    k(f's_lshl_b32 s{s_t0}, s{s_rb}, 10')
    k(f's_add_u32 s{s_t0}, s{s_t0}, {WS_ST1}')
    k(f'buffer_store_dwordx2 v[32:33], v2, s[{S_WS}:{S_WS+3}], s{s_t0} offen {ST}')
    k.label('k1_nost')
    k('s_waitcnt lgkmcnt(0)')
    k('s_barrier')
    k('s_endpgm')
    k.label('k1_prep')
    srd(k,S_X,'k',2048*2048)
    srd(k,S_W,'v',2048*2048)
    srd(k,S_A,'shk',1024*8)
    srd(k,S_B,'w3',1024*7168)
    k('s_sub_u32 s29, s29, 16')
    k('s_lshl_b32 s29, s29, 3')
    k('s_add_u32 s29, s29, s28')
    k(f's_lshr_b32 s{s_rb}, s29, 4')
    k(f's_and_b32 s{s_cb}, s29, 15')
    k('v_and_b32 v2, 7, v0')
    k('v_lshrrev_b32 v3, 3, v0')
    k(f's_lshl_b32 s{s_t0}, s{s_rb}, 19')
    k(f's_lshl_b32 s{s_t1}, s{s_cb}, 7')
    k(f's_add_u32 s{s_t0}, s{s_t0}, s{s_t1}')
    k('v_lshlrev_b32 v4, 13, v3')
    k('v_lshl_add_u32 v4, v2, 4, v4')
    k(f'v_add_u32 v6, s{s_t0}, v4')
    k('v_subrev_u32 v7, 6144, v6')
    k('v_subrev_u32 v8, 2048, v6')
    k('v_add_u32 v9, 4096, v6')
    k('v_lshlrev_b32 v10, 6, v2')
    k(f's_lshl_b32 s{s_t2}, s{s_cb}, 9')
    k('s_cmp_ge_u32 s29, 56')
    k(f's_cselect_b32 s{s_t0}, 1, 0')
    k(f's_mul_i32 s{s_t1}, s{s_t0}, 56')
    k(f's_sub_u32 s{s_t1}, s29, s{s_t1}')
    k(f's_mul_i32 s{s_t3}, s{s_t0}, {512*7168}')
    k(f's_lshl_b32 s{s_xo}, s{s_t1}, 7')
    k(f's_add_u32 s{s_xo}, s{s_xo}, s{s_t3}')
    k(f's_mul_i32 s{s_wo}, s{s_t0}, {3584*4}')
    k(f's_lshl_b32 s{s_t3}, s{s_t1}, 8')
    k(f's_add_u32 s{s_wo}, s{s_wo}, s{s_t3}')
    k(f's_add_u32 s{s_wo}, s{s_wo}, {WS_CS3}')
    k('v_mul_u32_u24 v11, 7168, v3')
    k('v_lshl_add_u32 v11, v2, 4, v11')
    k('s_waitcnt lgkmcnt(0)')
    KR=16; VR=44; SR=60; WR=76
    krows=[(7,0),(7,2048),(8,0),(6,0),(6,2048),(9,0),(9,2048)]
    for i,(v,o) in enumerate(krows): k(f'buffer_load_dwordx4 v[{KR+4*i}:{KR+4*i+3}], v{v}, s[{S_X}:{S_X+3}], 0 offen offset:{o}')
    for i,(v,o) in enumerate(krows[3:]): k(f'buffer_load_dwordx4 v[{VR+4*i}:{VR+4*i+3}], v{v}, s[{S_W}:{S_W+3}], 0 offen offset:{o}')
    for i in range(4): k(f'buffer_load_dwordx4 v[{SR+4*i}:{SR+4*i+3}], v10, s[{S_A}:{S_A+3}], s{s_t2} offen offset:{16*i}')
    k('s_cmp_ge_u32 s29, 112')
    k('s_cbranch_scc1 k1_now3')
    for i in range(8):
        k(f'buffer_load_dwordx4 v[{WR+4*i}:{WR+4*i+3}], v11, s[{S_B}:{S_B+3}], s{s_xo} offen')
        if i<7: k(f's_add_u32 s{s_xo}, s{s_xo}, {64*7168}')
    k('s_waitcnt vmcnt(8)')
    k('s_branch k1_kv')
    k.label('k1_now3')
    k('s_cmp_lg_u32 s29, 112')
    k('s_cbranch_scc1 k1_kv0')
    k('v_cmp_gt_u32 vcc, 24, v3')
    k('s_and_saveexec_b64 s[50:51], vcc')
    k('s_cbranch_execz k1_zdone')
    k('v_subrev_u32 v12, 8, v3')
    k('v_lshrrev_b32 v13, 1, v12')
    k('v_add_u32 v13, 8, v13')
    k('v_and_b32 v12, 1, v12')
    k('v_cmp_gt_u32 vcc, 8, v3')
    k('v_cndmask_b32 v13, v13, v3, vcc')
    k('v_cndmask_b32 v12, v12, 0, vcc') if False else k('v_mov_b32 v14, 0')
    k('v_cndmask_b32 v12, v12, v14, vcc')
    k('v_bfe_u32 v14, v13, 2, 1')
    k('v_sub_u32 v15, 2047, v12')
    k('v_cmp_eq_u32 vcc, 1, v14')
    k('v_cndmask_b32 v12, v12, v15, vcc')
    k('v_add_u32 v12, 8, v12')
    k(f's_mov_b32 s{s_t0}, {PANEL_H}')
    k(f'v_mul_lo_u32 v13, v13, s{s_t0}')
    k('v_lshl_add_u32 v13, v12, 7, v13')
    k('v_lshl_add_u32 v13, v2, 4, v13')
    for i in range(4): k(f'v_mov_b32 v{WR+i}, 0')
    k(f's_mov_b32 s{s_t0}, {WS_H}')
    k(f'buffer_store_dwordx4 v[{WR}:{WR+3}], v13, s[{S_WS}:{S_WS+3}], s{s_t0} offen {ST}')
    k.label('k1_zdone')
    k('s_mov_b64 exec, s[50:51]')
    k.label('k1_kv0')
    k('s_waitcnt vmcnt(0)')
    k.label('k1_kv')
    KU=108; SU=136; VU=152; AC=156; OUT=160
    def unp(dst,src):
        k(f'v_lshlrev_b32 v{dst}, 16, v{src}')
        k(f'v_and_b32 v{dst+1}, 0xffff0000, v{src}')
    for half in range(2):
        for r in range(7):
            for d in range(2): unp(KU+4*r+2*d, KR+4*r+2*half+d)
        for e in range(4):
            ch=4*half+e
            k(f'v_lshlrev_b32 v{SU+0+e}, 16, v{SR+2*ch}')
            k(f'v_and_b32 v{SU+4+e}, 0xffff0000, v{SR+2*ch}')
            k(f'v_lshlrev_b32 v{SU+8+e}, 16, v{SR+2*ch+1}')
            k(f'v_and_b32 v{SU+12+e}, 0xffff0000, v{SR+2*ch+1}')
        for rho in range(4):
            for d in range(2): unp(VU+2*d, VR+4*rho+2*half+d)
            for j in (3,2,1,0):
                for h in (0,2):
                    kk=KU+4*(rho+3-j)+h; ss=SU+4*j+h
                    if j==3: k(f'v_pk_mul_f32 v[{AC+h}:{AC+h+1}], v[{kk}:{kk+1}], v[{ss}:{ss+1}]')
                    else: k(f'v_pk_fma_f32 v[{AC+h}:{AC+h+1}], v[{kk}:{kk+1}], v[{ss}:{ss+1}], v[{AC+h}:{AC+h+1}]')
            for h in (0,2): k(f'v_pk_mul_f32 v[{AC+h}:{AC+h+1}], v[{AC+h}:{AC+h+1}], v[{VU+h}:{VU+h+1}]')
            for d in range(2): k(f'v_cvt_pk_bf16_f32 v{OUT+4*rho+2*half+d}, v{AC+2*d}, v{AC+2*d+1}')
    k('v_lshlrev_b32 v4, 4, v0')
    for rho in range(4): k(f'ds_write_b128 v4, v[{OUT+4*rho}:{OUT+4*rho+3}] offset:{rho*8192}')
    k('s_cmp_ge_u32 s29, 112')
    k('s_cbranch_scc1 k1_nocs')
    k('s_mov_b32 s45, 0x00003f80'); k('s_mov_b32 s46, 0x3f800000')
    for i in range(8): k(f'v_mov_b32 v{KU+i}, 0')
    k('s_waitcnt vmcnt(0)')
    for i in range(8):
        for d in range(4):
            k(f'v_dot2c_f32_bf16 v{KU+2*d}, s45, v{WR+4*i+d}')
            k(f'v_dot2c_f32_bf16 v{KU+2*d+1}, s46, v{WR+4*i+d}')
    reduce8_to2(k,KU)
    for i in range(2): k(f'v_add_f32_dpp v{KU+i}, v{KU+i}, v{KU+i} row_ror:8 row_mask:0xf bank_mask:0xf')
    k('v_lshrrev_b32 v5, 4, v1')
    k('v_lshlrev_b32 v5, 3, v5')
    k('v_lshl_add_u32 v5, v2, 5, v5')
    k(f's_lshl_b32 s{s_t0}, s{s_wave}, 8')
    k(f'v_add_u32 v5, s{s_t0}, v5')
    k(f'ds_write_b64 v5, v[{KU}:{KU+1}] offset:32768')
    k.label('k1_nocs')
    k('s_waitcnt lgkmcnt(0)')
    k('s_barrier')
    k(f's_lshr_b32 s{s_t0}, s{s_wave}, 1')
    k(f's_and_b32 s{s_t1}, s{s_wave}, 1')
    k('v_lshrrev_b32 v4, 4, v1')
    k('v_bfe_u32 v5, v1, 2, 2')
    k('v_lshl_add_u32 v5, v4, 3, v5')
    k('v_and_b32 v6, 3, v1')
    k('v_lshlrev_b32 v6, 3, v6')
    k('v_lshl_add_u32 v5, v5, 7, v6')
    k(f's_lshl_b32 s{s_t2}, s{s_t0}, 13')
    k(f's_lshl_b32 s{s_t3}, s{s_t1}, 6')
    k(f's_add_u32 s{s_t2}, s{s_t2}, s{s_t3}')
    k(f'v_add_u32 v5, s{s_t2}, v5')
    for dg in range(2):
        for hq in range(2):
            for h in range(2):
                r=16+8*(2*dg+hq)//2+0
                r=16+(dg*2+hq)*4+2*h
                k(f'ds_read_b64_tr_b16 v[{r}:{r+1}], v5 offset:{dg*32+hq*32*128+h*4*128}')
    k('v_and_b32 v6, 15, v1')
    k('v_lshlrev_b32 v6, 12, v6')
    k('v_lshl_add_u32 v6, v4, 4, v6')
    k(f's_lshl_b32 s{s_t2}, s{s_cb}, 18')
    k(f's_lshl_b32 s{s_t3}, s{s_t1}, 17')
    k(f's_add_u32 s{s_t2}, s{s_t2}, s{s_t3}')
    k(f's_lshl_b32 s{s_t3}, s{s_t0}, 10')
    k(f's_add_u32 s{s_t2}, s{s_t2}, s{s_t3}')
    k(f's_lshl_b32 s{s_t3}, s{s_rb}, 7')
    k(f's_add_u32 s{s_t2}, s{s_t2}, s{s_t3}')
    k(f's_add_u32 s{s_t2}, s{s_t2}, {WS_KVT}')
    k(f's_add_u32 s{s_t3}, s{s_t2}, 65536')
    k('s_waitcnt lgkmcnt(0)')
    for dg in range(2):
        for hq in range(2):
            r=16+(dg*2+hq)*4
            k(f'buffer_store_dwordx4 v[{r}:{r+3}], v6, s[{S_WS}:{S_WS+3}], s{s_t3 if dg else s_t2} offen offset:{hq*64} {ST}')
    k('s_cmp_ge_u32 s29, 112')
    k('s_cbranch_scc1 k1_pend')
    k(f's_cmp_lg_u32 s{s_wave}, 0')
    k('s_cbranch_scc1 k1_pend')
    k('v_lshlrev_b32 v4, 2, v1')
    for i in range(8): k(f'ds_read_b32 v{40+i}, v4 offset:{32768+i*256}')
    k('s_waitcnt lgkmcnt(0)')
    for i in range(1,8): k(f'v_add_f32 v40, v40, v{40+i}')
    k(f'buffer_store_dword v40, v4, s[{S_WS}:{S_WS+3}], s{s_wo} offen {ST}')
    k.label('k1_pend')
    if STAMPS:
        k('s_mov_b64 s[62:63], s[60:61]'); k('s_mov_b64 s[64:65], s[60:61]')
    stamp_out(k,0)
    return finish(k)

def unp(k,dst,src):
    k(f'v_lshlrev_b32 v{dst}, 16, v{src}')
    k(f'v_and_b32 v{dst+1}, 0xffff0000, v{src}')

def cprime(k,dst,tmp):
    k(f'v_lshrrev_b32 v{dst}, 4, v1')
    k(f'v_and_b32 v{tmp}, 1, v{dst}')
    k(f'v_lshrrev_b32 v{dst}, 1, v{dst}')
    k(f'v_lshl_or_b32 v{dst}, v{tmp}, 1, v{dst}')

def gen_k2():
    c=mkcfg(128,1024,4,2048,'panel',PANEL_H)
    k=Kernel('k2_kernel',256,512,c.ring,vgpr=192,agpr=64)
    entry(k)
    k('s_cmp_ge_u32 s29, 16')
    k('s_cbranch_scc1 k2_conv')
    srd(k,S_X,'q',2048*2048)
    srd(k,S_W,'w2',1024*2048)
    tile_map(k,8,4,4)
    k(f's_lshl_b32 s{s_xo}, s{s_rb}, 14')
    k(f's_add_u32 s{s_xo}, s{s_xo}, {WS_H+8*128}')
    k(f's_lshl_b32 s{s_wo}, s{s_cb}, 8')
    k(f's_cmp_ge_u32 s{s_wave}, 4')
    k('s_cbranch_scc1 k2_loader')
    c.vxa=6; c.vxa2=8; c.vwa=10; c.vwa2=14; c.acc=32; c.fx=(0,32); c.fw=(16,48)
    k(f's_lshr_b32 s{s_wm}, s{s_wave}, 1')
    k(f's_and_b32 s{s_wn}, s{s_wave}, 1')
    k('v_and_b32 v2, 15, v1')
    cprime(k,3,4)
    k('v_lshlrev_b32 v4, 11, v2')
    k('v_lshl_add_u32 v18, v3, 4, v4')
    k('v_lshlrev_b32 v19, 3, v2')
    k(f's_lshl_b32 s{s_t0}, s{s_rb}, 1')
    k(f's_add_u32 s{s_t0}, s{s_t0}, s{s_wm}')
    k(f's_lshl_b32 s{s_t1}, s{s_cb}, 1')
    k(f's_add_u32 s{s_t1}, s{s_t1}, s{s_wn}')
    k(f's_lshl_b32 s50, s{s_t0}, 17')
    k(f's_lshl_b32 s51, s{s_t1}, 7')
    k('s_add_u32 s50, s50, s51')
    k(f's_lshl_b32 s51, s{s_t0}, 9')
    k(f's_add_u32 s52, s51, {WS_ST1}')
    k(f's_lshl_b32 s53, s{s_t1}, 14')
    k('s_add_u32 s53, s53, s51')
    k(f's_add_u32 s53, s53, {WS_ST3}')
    k(f's_lshl_b32 s54, s{s_t1}, 18')
    k(f's_lshl_b32 s51, s{s_t0}, 13')
    k('s_add_u32 s54, s54, s51')
    k(f's_add_u32 s54, s54, {WS_X1}')
    k('v_and_b32 v4, 7, v2')
    k('v_xor_b32 v3, v3, v4')
    k('v_lshlrev_b32 v3, 4, v3')
    k('v_lshl_add_u32 v28, v2, 7, v3')
    k('v_xor_b32 v29, 64, v28')
    k('s_waitcnt lgkmcnt(0)')
    RAW=96
    for mt in range(4): k(f'buffer_load_dwordx2 v[{20+2*mt}:{21+2*mt}], v19, s[{S_WS}:{S_WS+3}], s52 offen offset:{mt*128}')
    for mt in range(4):
        for tp in range(2):
            r=RAW+4*(2*mt+tp)
            k(f'buffer_load_dwordx4 v[{r}:{r+3}], v18, s[{S_X}:{S_X+3}], s50 offen offset:{tp*64}')
        if mt<3: k('s_add_u32 s50, s50, 32768')
    compute_setup(k,c)
    k('s_waitcnt vmcnt(8)')
    for mt in range(4):
        k(f'v_mul_f32 v{20+2*mt}, v{20+2*mt}, v{21+2*mt}')
        k(f'v_sub_f32 v{20+2*mt}, 0, v{20+2*mt}')
    for mt in range(4):
        k(f's_waitcnt vmcnt({6-2*mt})')
        for tp in range(2):
            r=RAW+4*(2*mt+tp)
            k(f'v_permlane16_swap_b32 v{r}, v{r+2}')
            k(f'v_permlane16_swap_b32 v{r+1}, v{r+3}')
        for tp in range(2):
            r=RAW+4*(2*mt+tp); a=c.acc+4*(mt*4+2*tp); rs=20+2*mt
            for d in range(4): unp(k,a+2*d,r+d)
            for d in range(4): k(f'v_pk_fma_f32 v[{a+2*d}:{a+2*d+1}], v[{a+2*d}:{a+2*d+1}], v[{rs}:{rs+1}], v[{rs}:{rs+1}] op_sel:[0,1,0] op_sel_hi:[1,1,0]')
            for d in range(4): k(f'v_cvt_pk_bf16_f32 v{r+d}, v{a+2*d}, v{a+2*d+1}')
            for d in range(4): unp(k,a+2*d,r+d)
    compute_main(k,c)
    k('s_mov_b32 s44, 0x3f803f80')
    for i in range(8): k(f'v_mov_b32 v{20+i}, 0')
    n=0
    for mt in range(4):
        for tp in range(2):
            a=c.acc+4*(mt*4+2*tp); o=RAW+4*n; n+=1
            for d in range(4): k(f'v_cvt_pk_bf16_f32 v{o+d}, v{a+2*d}, v{a+2*d+1}')
            k(f's_add_u32 s{s_t1}, s54, {mt*2048}')
            k(f'v_permlane16_swap_b32 v{o}, v{o+2}')
            k(f'v_permlane16_swap_b32 v{o+1}, v{o+3}')
            k(f'buffer_store_dwordx4 v[{o}:{o+3}], v{28+tp}, s[{S_WS}:{S_WS+3}], s{s_t1} offen {ST}')
            for d in range(4):
                k(f'v_dot2c_f32_bf16 v{20+2*mt}, s44, v{o+d}')
                k(f'v_dot2c_f32_bf16 v{21+2*mt}, v{o+d}, v{o+d}')
    reduce8_to2(k,20)
    k('v_lshlrev_b32 v2, 3, v1')
    k(f'buffer_store_dwordx2 v[20:21], v2, s[{S_WS}:{S_WS+3}], s53 offen {ST}')
    stamp_out(k,1)
    k('s_endpgm')
    k.label('k2_loader')
    loader_setup(k,c)
    k('s_waitcnt lgkmcnt(0)')
    loader_main(k,c)
    k('s_endpgm')
    k.label('k2_conv')
    srd(k,S_X,'ssmk',1024*4096)
    k(f's_load_dwordx2 s[16:17], s[0:1], {KA["ssmD"]}')
    k('s_sub_u32 s29, s29, 16')
    k('s_lshl_b32 s29, s29, 3')
    k('s_add_u32 s29, s29, s28')
    k('s_lshl_b32 s29, s29, 3')
    k(f's_add_u32 s29, s29, s{s_wave}')
    WBS=8832; UO=4224
    k(f's_mul_i32 s50, s{s_wave}, {WBS}')
    k('s_lshl_b32 s51, s29, 12')
    k(f's_add_u32 s52, s51, {WS_KVT}')
    k(f's_add_u32 s53, s51, {WS_Y2T}')
    k('s_lshr_b32 s54, s29, 1')
    k('s_lshl_b32 s54, s54, 2')
    k('v_lshlrev_b32 v2, 4, v1')
    k('s_waitcnt lgkmcnt(0)')
    k('s_load_dword s55, s[16:17], s54')
    k('s_add_u32 m0, s50, 32')
    for i in range(4): k(f'buffer_load_dwordx4 v2, s[{S_X}:{S_X+3}], s51 offen offset:{i*1024} lds')
    for r in range(4):
        k(f's_add_u32 m0, s50, {UO+128+r*128}')
        k(f'buffer_load_dwordx4 v2, s[{S_WS}:{S_WS+3}], s52 offen offset:{r*1024} lds')
    k('v_lshrrev_b32 v3, 3, v1')
    k('v_mul_u32_u24 v3, 1152, v3')
    k('v_and_b32 v4, 7, v1')
    k('v_lshl_add_u32 v3, v4, 4, v3')
    k(f'v_add_u32 v3, {UO}, v3')
    k('v_and_b32 v4, 1, v1')
    k('v_lshlrev_b32 v4, 4, v4')
    k('v_cmp_gt_u32 vcc, 32, v1')
    k('v_cndmask_b32 v3, v4, v3, vcc')
    k('v_add_u32 v3, s50, v3')
    for i in range(32): k(f'v_mov_b32 v{32+i}, 0')
    k('ds_write_b128 v3, v[32:35]')
    k('v_lshrrev_b32 v3, 4, v1')
    k('v_bfe_u32 v4, v1, 2, 2')
    k('v_and_b32 v5, 3, v1')
    k('v_lshlrev_b32 v6, 6, v3')
    k('v_lshl_add_u32 v6, v4, 3, v6')
    k('v_lshlrev_b32 v5, 3, v5')
    k('v_sub_u32 v6, v5, v6')
    k('v_add_u32 v6, 224, v6')
    k('v_add_u32 v6, s50, v6')
    k('v_and_b32 v4, 15, v1')
    k('v_lshlrev_b32 v7, 3, v4')
    k('v_lshl_add_u32 v7, v3, 4, v7')
    k(f'v_add_u32 v7, {UO+128-120}, v7')
    k('v_add_u32 v7, s50, v7')
    k('v_lshlrev_b32 v8, 3, v4')
    k('v_lshl_add_u32 v8, v3, 1, v8')
    k(f'v_add_u32 v8, {UO+128}, v8')
    k('v_add_u32 v8, s50, v8')
    k('v_subrev_u32 v9, 16, v1')
    k('v_add_u32 v10, 47, v1')
    k('v_cmp_gt_u32 vcc, 16, v1')
    k('v_cndmask_b32 v9, v9, v10, vcc')
    k('v_mov_b32 v10, 63')
    k('v_cmp_eq_u32 vcc, 0, v1')
    k('v_cndmask_b32 v9, v9, v10, vcc')
    k('v_lshlrev_b32 v9, 2, v9')
    k('v_and_b32 v5, 1, v3')
    k('v_lshlrev_b32 v10, 9, v5')
    k('v_lshl_add_u32 v10, v4, 5, v10')
    k('v_lshrrev_b32 v5, 1, v3')
    k('v_lshl_add_u32 v10, v5, 4, v10')
    k('v_cmp_eq_u32 s[56:57], 63, v1')
    k('s_waitcnt vmcnt(0) lgkmcnt(0)')
    if STAMPS: k('s_memtime s[62:63]'); k('s_waitcnt lgkmcnt(0)')
    k('s_bitcmp1_b32 s29, 0')
    k('s_cselect_b32 s54, 0, 16')
    k('s_lshl_b32 s55, s55, s54')
    k('s_and_b32 s55, s55, 0xffff0000')
    lq=LQ(k)
    ACC=64
    Z=lambda rho,T: ACC+4*(rho*8+T)
    items=[]
    for i in range(8):
        for rho in range(4):
            items.append((-1+i,rho)); items.append((14-i,rho))
    NB=4; BB=16
    def bread(n):
        e,rho=items[n]; r=BB+4*(n%NB); o=rho*1152+64*(e+1)
        lq.issue(f'ds_read_b64 v[{r}:{r+1}], v7 offset:{o}',('b',n))
        lq.issue(f'ds_read_b64 v[{r+2}:{r+3}], v7 offset:{o+8}',('b',n))
    def aread(jj):
        for h in range(2):
            lq.issue(f'ds_read_b64_tr_b16 a[{4*jj+2*h}:{4*jj+2*h+1}], v6 offset:{256*jj+32*(1-h)}',('a',jj))
    bread(0)
    for jj in (1,3,5,7,9,11,13,15,0): aread(jj)
    bread(1); bread(2)
    pend_a=[2,4,6,8,10,12,14]
    for n,(e,rho) in enumerate(items):
        r=BB+4*(n%NB)
        first=True
        for T in range(8):
            jj=2*T-e
            if jj<0 or jj>15: continue
            lq.need([('b',n),('a',jj)])
            z=Z(rho,T)
            k(f'v_mfma_f32_16x16x32_bf16 v[{z}:{z+3}], a[{4*jj}:{4*jj+3}], v[{r}:{r+3}], {"0" if e==-1 else f"v[{z}:{z+3}]"}')
            if first:
                first=False
                if n+3<len(items): bread(n+3)
            elif pend_a and n>=0: aread(pend_a.pop(0))
    if STAMPS: k('s_memtime s[64:65]'); k('s_waitcnt lgkmcnt(0)')
    lq.drain()
    for T in range(8):
        for r in range(4): k(f'ds_read_u16_d16_hi v{32+4*T+r}, v8 offset:{r*1152+T*128}')
    for T in range(8):
        z0,z1,z2,z3=[Z(r,T) for r in range(4)]
        k(f'v_add_f32 v{z1+3}, v{z1+3}, v{z2+2}')
        k(f'v_add_f32 v{z1+3}, v{z1+3}, v{z3+1}')
        k(f'v_add_f32 v{z2+3}, v{z2+3}, v{z3+2}')
    k('v_mov_b32 v11, 0')
    for T in range(7,-1,-1):
        for rho in (1,2,3):
            prev=f'v{Z(rho,T-1)+3}' if T else 'v11'
            k(f'v_cndmask_b32 v{Z(rho,T)+3}, v{Z(rho,T)+3}, {prev}, s[56:57]')
    for T in range(8):
        for rho in (1,2,3): k(f'ds_bpermute_b32 v{Z(rho,T)+3}, v9, v{Z(rho,T)+3}')
    for T in range(8):
        z0,z1,z2,z3=[Z(r,T) for r in range(4)]
        k(f'v_add_f32 v{z0+1}, v{z0+1}, v{z1}')
        k(f'v_add_f32 v{z0+2}, v{z0+2}, v{z1+1}')
        k(f'v_add_f32 v{z0+3}, v{z0+3}, v{z1+2}')
        k(f'v_add_f32 v{z0+2}, v{z0+2}, v{z2}')
        k(f'v_add_f32 v{z0+3}, v{z0+3}, v{z2+1}')
        k(f'v_add_f32 v{z0+3}, v{z0+3}, v{z3}')
    k('s_waitcnt lgkmcnt(0)')
    for T in range(8):
        z0=Z(0,T)
        for r in range(4): k(f'v_fmac_f32 v{z0+r}, s55, v{32+4*T+r}')
        for r in range(3): k(f'v_add_f32 v{z0+r}, v{z0+r}, v{Z(r+1,T)+3}')
    for T in range(0,8,2):
        o=16+4*(T//2); a=Z(0,T); b=Z(0,T+1)
        k(f'v_cvt_pk_bf16_f32 v{o}, v{a}, v{a+1}')
        k(f'v_cvt_pk_bf16_f32 v{o+1}, v{a+2}, v{a+3}')
        k(f'v_cvt_pk_bf16_f32 v{o+2}, v{b}, v{b+1}')
        k(f'v_cvt_pk_bf16_f32 v{o+3}, v{b+2}, v{b+3}')
        k(f'v_permlane16_swap_b32 v{o}, v{o+2}')
        k(f'v_permlane16_swap_b32 v{o+1}, v{o+3}')
        k(f'buffer_store_dwordx4 v[{o}:{o+3}], v10, s[{S_WS}:{S_WS+3}], s53 offen offset:{T*512} {ST}')
    stamp_out(k,1)
    return finish(k)

G3MAP=(4,8)
def gen_k3():
    c=mkcfg(224,1024,3,7168,'panel',PANEL)
    LDS_RS=c.ring; LDS_CS=c.ring+1024
    k=Kernel('k3_kernel',256,512,c.ring+2048,vgpr=168,agpr=88)
    entry(k)
    srd(k,S_W,'w3',1024*7168)
    tile_map(k,16,*G3MAP)
    k(f's_lshl_b32 s{s_xo}, s{s_rb}, 14')
    k(f's_add_u32 s{s_xo}, s{s_xo}, {WS_X1}')
    k(f's_mul_i32 s{s_wo}, s{s_cb}, 448')
    k(f's_cmp_ge_u32 s{s_wave}, 4')
    k('s_cbranch_scc1 k3_loader')
    c.vxa=6; c.vxa2=8; c.vwa=10; c.vwa2=12; c.acc=32; c.fx=(0,44); c.fw=(16,60)
    compute_setup(k,c)
    for i in range(112): k(f'v_mov_b32 v{c.acc+i}, 0')
    k('v_and_b32 v2, 15, v1')
    cprime(k,3,4)
    k(f's_lshl_b32 s{s_t0}, s{s_cb}, 1')
    k(f's_add_u32 s{s_t0}, s{s_t0}, s{s_wn}')
    k(f's_mul_i32 s{s_t0}, s{s_t0}, 14')
    k('v_and_b32 v5, 7, v2')
    for tp in range(4):
        if tp<3:
            k(f's_add_u32 s{s_t1}, s{s_t0}, {4*tp}')
            k(f'v_add_u32 v18, s{s_t1}, v3')
        else:
            k(f's_add_u32 s{s_t1}, s{s_t0}, 12')
            k('v_lshrrev_b32 v18, 5, v1')
            k(f'v_add_u32 v18, s{s_t1}, v18')
        k('v_and_b32 v19, 7, v18')
        k('v_xor_b32 v19, v19, v5')
        k('v_lshlrev_b32 v19, 4, v19')
        k('v_lshrrev_b32 v18, 3, v18')
        k('v_lshl_add_u32 v19, v18, 18, v19')
        k(f'v_lshl_add_u32 v{28+tp}, v2, 7, v19')
    k('v_bfe_u32 v18, v1, 4, 1')
    k('v_lshl_add_u32 v31, v18, 11, v31')
    k(f's_lshl_b32 s{s_t2}, s{s_rb}, 14')
    k(f's_lshl_b32 s{s_t0}, s{s_wm}, 13')
    k(f's_add_u32 s{s_t2}, s{s_t2}, s{s_t0}')
    k(f's_add_u32 s{s_t2}, s{s_t2}, {WS_H3}')
    k('s_waitcnt lgkmcnt(0)')
    compute_main(k,c)
    ln_gelu_epilogue(k,c,LDS_RS,LDS_CS,1,[28,29,30,31],144,[160,164,6,10,14,32,36],20,s_t2,late=(5,6))
    stamp_out(k,2)
    k('s_endpgm')
    k.label('k3_loader')
    loader_setup(k,c)
    k('v_and_b32 v2, 31, v1')
    k('v_lshrrev_b32 v3, 5, v1')
    k('v_lshlrev_b32 v20, 3, v2')
    k('v_lshl_add_u32 v21, v3, 17, v20')
    k(f's_lshl_b32 s50, s{s_rb}, 10')
    k(f's_lshl_b32 s51, s{s_lw}, 8')
    k('s_add_u32 s50, s50, s51')
    k(f's_add_u32 s50, s50, {WS_ST3}')
    k(f'v_add_u32 v20, s51, v20')
    k(f'v_add_u32 v20, {LDS_RS}, v20')
    k('v_lshlrev_b32 v22, 2, v1')
    k(f's_mul_i32 s51, s{s_lw}, 224')
    k(f's_mul_i32 s52, s{s_cb}, 896')
    k('s_add_u32 s52, s52, s51')
    k(f's_add_u32 s52, s52, {WS_CS3}')
    k(f's_add_u32 s53, s52, {3584*4}')
    k(f's_add_u32 s51, s51, {LDS_CS}')
    k('v_add_u32 v23, s51, v22')
    def tail(s):
        if s==c.S-c.R:
            for p in range(8):
                k(f'buffer_load_dwordx2 v[{32+2*p}:{33+2*p}], v21, s[{S_WS}:{S_WS+3}], s50 offen')
                if p<7: k('s_add_u32 s50, s50, 16384')
            k(f'buffer_load_dword v48, v22, s[{S_WS}:{S_WS+3}], s52 offen')
            k(f'buffer_load_dword v49, v22, s[{S_WS}:{S_WS+3}], s53 offen')
            return 10
        if s==c.S-2:
            k('s_waitcnt vmcnt(0)')
            for p in range(1,8): k(f'v_pk_add_f32 v[32:33], v[32:33], v[{32+2*p}:{33+2*p}]')
            k('v_mov_b32 v34, v32'); k('v_mov_b32 v35, v33')
            k('v_permlane32_swap_b32 v32, v34')
            k('v_permlane32_swap_b32 v33, v35')
            k('v_pk_add_f32 v[32:33], v[32:33], v[34:35]')
            ln_finish(k,32,33,34,36,38)
            k('v_mul_f32 v39, v36, v38')
            k('v_sub_f32 v39, 0, v39')
            k('ds_write_b64 v20, v[38:39]')
            k('v_add_f32 v48, v48, v49')
            k('ds_write_b32 v23, v48')
        return 0
    c.tail=tail
    k('s_waitcnt lgkmcnt(0)')
    loader_main(k,c)
    return finish(k)

def gen_k4():
    c=mkcfg(64,3584,5,2048,'panel',PANEL)
    LDS_Y=c.ring
    k=Kernel('k4_kernel',256,512,c.ring+16384,vgpr=192,agpr=48)
    entry(k)
    srd(k,S_W,'w4',3584*2048)
    srd(k,S_X,'q',2048*2048)
    srd(k,S_A,'out',2048*2048)
    tile_map(k,16,4,8)
    k(f's_lshl_b32 s{s_xo}, s{s_rb}, 14')
    k(f's_add_u32 s{s_xo}, s{s_xo}, {WS_H3}')
    k(f's_lshl_b32 s{s_wo}, s{s_cb}, 7')
    k(f's_cmp_ge_u32 s{s_wave}, 4')
    k('s_cbranch_scc1 k4_loader')
    c.vxa=6; c.vxa2=8; c.vwa=10; c.vwa2=12; c.acc=32; c.fx=(0,24); c.fw=(16,40)
    k(f's_lshr_b32 s{s_wm}, s{s_wave}, 1')
    k(f's_and_b32 s{s_wn}, s{s_wave}, 1')
    k('v_and_b32 v2, 15, v1')
    cprime(k,3,4)
    k('v_lshlrev_b32 v4, 11, v2')
    k('v_lshl_add_u32 v18, v3, 4, v4')
    k('v_lshlrev_b32 v19, 3, v2')
    k(f's_lshl_b32 s{s_t0}, s{s_rb}, 1')
    k(f's_add_u32 s{s_t0}, s{s_t0}, s{s_wm}')
    k(f's_lshl_b32 s50, s{s_t0}, 17')
    k(f's_lshl_b32 s51, s{s_cb}, 7')
    k('s_add_u32 s50, s50, s51')
    k(f's_lshl_b32 s51, s{s_wn}, 6')
    k('s_add_u32 s50, s50, s51')
    k(f's_lshl_b32 s51, s{s_t0}, 9')
    k(f's_add_u32 s52, s51, {WS_ST1}')
    k(f's_lshl_b32 s54, s{s_cb}, 18')
    k(f's_lshl_b32 s51, s{s_t0}, 13')
    k('s_add_u32 s54, s54, s51')
    k(f's_add_u32 s54, s54, {WS_X1}')
    k(f's_lshl_b32 s51, s{s_wn}, 2')
    k('v_add_u32 v3, s51, v3')
    k('v_and_b32 v4, 7, v2')
    k('v_xor_b32 v3, v3, v4')
    k('v_lshlrev_b32 v3, 4, v3')
    k('v_lshl_add_u32 v28, v2, 7, v3')
    k('v_lshrrev_b32 v3, 3, v1')
    k('v_and_b32 v4, 7, v1')
    k('v_lshlrev_b32 v4, 4, v4')
    k('v_lshl_add_u32 v29, v3, 12, v4')
    k(f's_lshl_b32 s55, s{s_cb}, 18')
    k(f's_lshl_b32 s51, s{s_wn}, 17')
    k('s_add_u32 s55, s55, s51')
    k(f's_lshl_b32 s51, s{s_t0}, 7')
    k('s_add_u32 s55, s55, s51')
    k(f's_add_u32 s55, s55, {WS_Y2T}')
    k(f's_lshl_b32 s56, s{s_wave}, 12')
    k(f's_add_u32 s56, s56, {LDS_Y}')
    k('s_waitcnt lgkmcnt(0)')
    R1=64; RX=80; XF=96; PF=128; YR=160
    for mt in range(4):
        k(f's_add_u32 s51, s54, {mt*2048}')
        k(f'buffer_load_dwordx4 v[{R1+4*mt}:{R1+4*mt+3}], v28, s[{S_WS}:{S_WS+3}], s51 offen')
    for mt in range(4): k(f'buffer_load_dwordx2 v[{20+2*mt}:{21+2*mt}], v19, s[{S_WS}:{S_WS+3}], s52 offen offset:{mt*128}')
    for mt in range(4):
        k(f's_add_u32 s51, s50, {mt*32768}')
        k(f'buffer_load_dwordx4 v[{RX+4*mt}:{RX+4*mt+3}], v18, s[{S_X}:{S_X+3}], s51 offen')
    for i in range(4):
        k(f's_add_u32 m0, s56, {i*1024}')
        k(f'buffer_load_dwordx4 v29, s[{S_WS}:{S_WS+3}], s55 offen lds')
        if i<3: k('s_add_u32 s55, s55, 32768')
    compute_setup(k,c)
    k('v_lshrrev_b32 v3, 2, v1')
    k('v_and_b32 v4, 3, v1')
    k('v_lshlrev_b32 v4, 3, v4')
    k('v_lshl_add_u32 v3, v3, 7, v4')
    k('v_add_u32 v30, s56, v3')
    k('s_waitcnt vmcnt(12)')
    for mt in range(4):
        r=R1+4*mt
        k(f'v_permlane16_swap_b32 v{r}, v{r+2}')
        k(f'v_permlane16_swap_b32 v{r+1}, v{r+3}')
    for mt in range(4):
        for d in range(4): unp(k,c.acc+8*mt+2*d,R1+4*mt+d)
    k('s_waitcnt vmcnt(4)')
    for mt in range(4):
        r=RX+4*mt
        k(f'v_permlane16_swap_b32 v{r}, v{r+2}')
        k(f'v_permlane16_swap_b32 v{r+1}, v{r+3}')
        k(f'v_mul_f32 v{20+2*mt}, v{20+2*mt}, v{21+2*mt}')
        k(f'v_sub_f32 v{20+2*mt}, 0, v{20+2*mt}')
    for mt in range(4):
        rs=20+2*mt
        for d in range(4): unp(k,XF+8*mt+2*d,RX+4*mt+d)
        for d in range(4):
            x=XF+8*mt+2*d; p=PF+8*mt+2*d
            k(f'v_pk_fma_f32 v[{p}:{p+1}], v[{x}:{x+1}], v[{rs}:{rs+1}], v[{rs}:{rs+1}] op_sel:[0,1,0] op_sel_hi:[1,1,0]')
    k('s_waitcnt vmcnt(0)')
    for mt in range(4):
        for t in range(2):
            r=YR+4*mt+2*t
            k(f'ds_read_b64_tr_b16 v[{r}:{r+1}], v30 offset:{t*2048+mt*32}')
    k('s_waitcnt lgkmcnt(0)')
    for mt in range(4):
        for d in range(4):
            unp(k,R1+2*d,YR+4*mt+d)
        for d in range(4):
            p=PF+8*mt+2*d
            k(f'v_pk_mul_f32 v[{p}:{p+1}], v[{p}:{p+1}], v[{R1+2*d}:{R1+2*d+1}]')
    compute_main(k,c)
    k(f's_mov_b32 s44, {f2u(-LOG2E):#x}'); k(f's_mov_b32 s45, {f2u(-LOG2E):#x}')
    k('s_mov_b32 s48, 1.0'); k('s_mov_b32 s49, 1.0')
    for mt in range(4):
        a=c.acc+8*mt; t=R1+8*(mt%2); o=RX+4*mt
        for d in range(4): k(f'v_pk_mul_f32 v[{t+2*d}:{t+2*d+1}], v[{a+2*d}:{a+2*d+1}], s[44:45]')
        for d in range(8): k(f'v_exp_f32 v{t+d}, v{t+d}')
        for d in range(4): k(f'v_pk_add_f32 v[{t+2*d}:{t+2*d+1}], v[{t+2*d}:{t+2*d+1}], s[48:49]')
        for d in range(8): k(f'v_rcp_f32 v{t+d}, v{t+d}')
        for d in range(4): k(f'v_pk_mul_f32 v[{t+2*d}:{t+2*d+1}], v[{t+2*d}:{t+2*d+1}], v[{a+2*d}:{a+2*d+1}]')
        for d in range(4):
            x=XF+8*mt+2*d; p=PF+8*mt+2*d
            k(f'v_pk_fma_f32 v[{t+2*d}:{t+2*d+1}], v[{t+2*d}:{t+2*d+1}], v[{p}:{p+1}], v[{x}:{x+1}]')
        for d in range(4): k(f'v_cvt_pk_bf16_f32 v{o+d}, v{t+2*d}, v{t+2*d+1}')
        k(f's_add_u32 s51, s50, {mt*32768}')
        k(f'v_permlane16_swap_b32 v{o}, v{o+2}')
        k(f'v_permlane16_swap_b32 v{o+1}, v{o+3}')
        k(f'buffer_store_dwordx4 v[{o}:{o+3}], v18, s[{S_A}:{S_A+3}], s51 offen {ST}')
    stamp_out(k,3)
    k('s_endpgm')
    k.label('k4_loader')
    loader_setup(k,c)
    k('s_waitcnt lgkmcnt(0)')
    loader_main(k,c)
    return finish(k)
```

```python
import sys, math, struct
from asmlib import *
import hazard

KA=dict(q=0,k=8,v=16,shk=24,ssmk=32,ssmD=40,bx=48,w1=56,w2=64,w3=72,w4=80,out=88,dbg=96,ws=104)
EP=2048*16
EP_H=EP
WS_H3 =0x0000000
WS_H  =0x0000000
WS_KVT=0x0400000
WS_X1 =0x1000000
WS_Y2T=0x1400000
WS_ST1=0x2300000
WS_AB =0x2308000
WS_CS1=0x2380000
WS_ST3=0x2310000
WS_CS3=0x23A0000
WS_STAMP=0x8000000
WS_SIZE=0x10000000
ST='sc1'
STAMPS=False
NODMA=False
WPAD=False
WMERGE=False
STO='sc1'
DBGT=False

def f2u(x): return struct.unpack('<I',struct.pack('<f',x))[0]
LOG2E=1.4426950408889634
GA=-2.0*math.sqrt(2.0/math.pi)*LOG2E
GB=GA*0.044715

class G:
    def __init__(self, **kw): self.__dict__.update(kw)

S_WS=4; S_X=8; S_W=12; S_A=16; S_B=20; S_C=24
s_xo=30; s_wo=31; s_cnt=32; s_wave=33; s_rb=34; s_cb=35; s_t0=36; s_t1=37; s_t2=38; s_t3=39
s_lw=40; s_lx=41; s_lwb=42; s_wm=40; s_wn=41
s_c0=44

def srd(k, base, arg, size):
    k(f's_load_dwordx2 s[{base}:{base+1}], s[0:1], {KA[arg]}')
    k(f's_mov_b32 s{base+2}, {size}')
    k(f's_mov_b32 s{base+3}, 0x20000')

def wswz_bits(Nt): return {64:[(1,0),(3,1)], 128:[(0,0),(1,1),(3,2)], 224:[(3,0)]}[Nt]
def emit_f(k, dst, krow, tmp, Nt):
    first=True
    if Nt==128:
        k(f'v_and_b32 v{dst}, 3, v{krow}')
        k(f'v_bfe_u32 v{tmp}, v{krow}, 3, 1')
        k(f'v_lshl_or_b32 v{dst}, v{tmp}, 2, v{dst}')
        return
    for sb,db in wswz_bits(Nt):
        if first:
            k(f'v_bfe_u32 v{dst}, v{krow}, {sb}, 1'); assert db==0
            first=False
        else:
            k(f'v_bfe_u32 v{tmp}, v{krow}, {sb}, 1')
            k(f'v_lshl_or_b32 v{dst}, v{tmp}, {db}, v{dst}')

def mkcfg(Nt,K,R,wpitch,xmode,ep):
    c=G(Nt=Nt,K=K,R=R,wpitch=wpitch,xmode=xmode,ep=ep,xadv=(128 if xmode=='rows' else 8*ep),xadv_fn=None,nloop=None,fill=None,fxp='a',pfill=None,loop_top=None,rot=None)
    c.NT=Nt//32; c.S=K//64
    c.stage=16384+64*Nt*2
    c.nwb={64:2,128:4,224:2}[Nt]
    c.split={64:73728,128:65536,224:90112}[Nt]
    c.ring=R*c.stage
    c.sX=S_X if xmode=='rows' else S_WS
    c.aux=None
    c.bar_at={64:1,128:3,224:4}[Nt]
    return c

def loader_setup(k,c):
    L=1; t0,t1,t2,t3=2,3,4,5
    Nt=c.Nt; CPR=Nt//8; NWL=Nt//32
    k(f's_sub_u32 s{s_lw}, s{s_wave}, 4')
    k(f's_lshl_b32 s{s_lx}, s{s_lw}, 12')
    if c.xmode=='rows':
        k(f'v_lshrrev_b32 v{t0}, 3, v{L}')
        k(f'v_and_b32 v{t1}, 7, v{L}')
        k(f'v_xor_b32 v{t1}, v{t1}, v{t0}')
        k(f'v_lshlrev_b32 v{t1}, 4, v{t1}')
        k(f's_lshl_b32 s{s_t0}, s{s_lw}, 5')
        k(f's_add_u32 s{s_t0}, s{s_t0}, s43')
        k(f'v_add_u32 v{t0}, s{s_t0}, v{t0}')
        k(f'v_lshl_add_u32 v6, v{t0}, 11, v{t1}')
        for i in range(1,4): k(f'v_add_u32 v{6+i}, {i*8*2048-i*1024}, v6')
    else:
        k(f's_mul_i32 s{s_t0}, s{s_lw}, {2*c.ep}')
        k(f'v_lshl_add_u32 v6, v{L}, 4, s{s_t0}')
        k(f'v_add_u32 v7, {c.ep-2048}, v6')
    k(f's_mul_i32 s{s_t0}, s{s_lw}, {NWL*64}')
    k(f's_mov_b32 s{s_t1}, {c.wpitch}')
    for i in range(NWL):
        k(f'v_add_u32 v{t0}, s{s_t0}, v{L}')
        if i: k(f'v_add_u32 v{t0}, {i*64}, v{t0}')
        if CPR==28:
            k(f'v_mul_u32_u24 v{t1}, 2341, v{t0}')
            k(f'v_lshrrev_b32 v{t1}, 16, v{t1}')
            k(f'v_mul_u32_u24 v{t2}, 28, v{t1}')
            k(f'v_sub_u32 v{t0}, v{t0}, v{t2}')
        else:
            sh={8:3,16:4}[CPR]
            k(f'v_lshrrev_b32 v{t1}, {sh}, v{t0}')
            k(f'v_and_b32 v{t0}, {CPR-1}, v{t0}')
        emit_f(k,t2,t1,t3,Nt)
        k(f'v_lshlrev_b32 v{t2}, 1, v{t2}')
        k(f'v_xor_b32 v{t0}, v{t0}, v{t2}')
        k(f'v_mul_lo_u32 v{t1}, v{t1}, s{s_t1}')
        k(f'v_lshl_add_u32 v{10+i}, v{t0}, 4, v{t1}')
        if i%4: k(f'v_subrev_u32 v{10+i}, {(i%4)*1024}, v{10+i}')
    k(f's_mul_i32 s{s_lwb}, s{s_lw}, {NWL*1024}')
    k(f's_add_u32 s{s_lwb}, s{s_lwb}, 16384')
    if c.rot:
        mr,mc,n=c.rot
        k(f's_mov_b32 s96, s{s_xo}')
        k(f's_mov_b32 s97, s{s_wo}')
        k(f's_add_u32 s98, s{s_wo}, {c.S*64*c.wpitch}')
        k(f's_mul_i32 s{s_t0}, s{s_rb}, {mr}')
        k(f's_mul_i32 s{s_t1}, s{s_cb}, {mc}')
        k(f's_add_u32 s{s_t0}, s{s_t0}, s{s_t1}')
        k(f's_and_b32 s{s_t0}, s{s_t0}, {n-1}')
        k(f's_mul_i32 s{s_t1}, s{s_t0}, {c.S//n*c.xadv}')
        k(f's_add_u32 s{s_xo}, s{s_xo}, s{s_t1}')
        k(f's_mul_i32 s{s_t1}, s{s_t0}, {c.S//n*64*c.wpitch}')
        k(f's_add_u32 s{s_wo}, s{s_wo}, s{s_t1}')

def loader_issue(k,c,slot,stage=None):
    NWL=c.Nt//32; base=slot*c.stage
    if NODMA: return
    k(f's_add_u32 m0, s{s_lx}, {base}')
    for i in range(4):
        v=6+i if c.xmode=='rows' else 6+(i>>1)
        k(f'buffer_load_dwordx4 v{v}, s[{c.sX}:{c.sX+3}], s{s_xo} offen offset:{i*1024} lds')
    for i in range(NWL):
        if i%4==0: k(f's_add_u32 m0, s{s_lwb}, {base+i*1024}')
        k(f'buffer_load_dwordx4 v{10+i}, s[{S_W}:{S_W+3}], s{s_wo} offen offset:{(i%4)*1024} lds')
    k(f's_add_u32 s{s_xo}, s{s_xo}, {c.xadv if c.xadv_fn is None else c.xadv_fn(stage)}')
    k(f's_add_u32 s{s_wo}, s{s_wo}, {64*c.wpitch}')
    if c.rot:
        k(f's_cmp_eq_u32 s{s_wo}, s98')
        k(f's_cselect_b32 s{s_xo}, s96, s{s_xo}')
        k(f's_cselect_b32 s{s_wo}, s97, s{s_wo}')

def loader_main(k,c):
    S=c.S; R=c.R; per=4+c.Nt//32
    aux=c.aux or (lambda slot: None)
    loader_issue(k,c,0,0); loader_issue(k,c,1,1)
    if getattr(c,'post_issue',None): c.post_issue()
    k(f's_waitcnt vmcnt({per})')
    k('s_barrier')
    for s in range(2,R): loader_issue(k,c,s,s)
    aux(0)
    k(f's_waitcnt vmcnt({(R-2)*per}) lgkmcnt(0)')
    nloop=(S-R)//R if c.xadv_fn is None else 0
    def it(s, steady):
        if not steady and s==S-1 and getattr(c,'nolastbar',False): return
        k('s_barrier')
        if steady or s+R<S: loader_issue(k,c,s%R,s+R)
        if steady or s+1<S: aux((s+1)%R)
        if steady: k(f's_waitcnt vmcnt({(R-2)*per}) lgkmcnt(0)')
        else:
            extra=c.tail(s) if getattr(c,'tail',None) else 0
            last=min(s+R,S-1)
            if s+2<=S-1: k(f's_waitcnt vmcnt({(last-(s+2))*per+extra}) lgkmcnt(0)')
            else: k('s_waitcnt lgkmcnt(0)')
    if nloop:
        k(f's_mov_b32 s{s_cnt}, {nloop}')
        Lb=k.newlabel('ld'); k('.p2align 3'); k.label(Lb)
        for s in range(R): it(s,True)
        k(f's_sub_u32 s{s_cnt}, s{s_cnt}, 1')
        k(f's_cmp_lg_u32 s{s_cnt}, 0')
        k(f's_cbranch_scc1 {Lb}')
    for s in range(nloop*R,S): it(s,False)

def compute_setup(k,c):
    L=1; t0,t1,t2,t3=2,3,4,5
    Nt=c.Nt; NT=c.NT; P=Nt*2
    k(f's_lshr_b32 s{s_wm}, s{s_wave}, 1')
    k(f's_and_b32 s{s_wn}, s{s_wave}, 1')
    k(f'v_and_b32 v{t0}, 15, v{L}')
    k(f'v_lshrrev_b32 v{t1}, 4, v{L}')
    if c.xmode=='rows':
        k(f'v_and_b32 v{t2}, 7, v{L}')
        k(f'v_xor_b32 v{t2}, v{t2}, v{t1}')
        k(f'v_lshlrev_b32 v{t2}, 4, v{t2}')
        k(f'v_lshl_add_u32 v{t2}, v{t0}, 7, v{t2}')
        k(f's_lshl_b32 s{s_t0}, s{s_wm}, 13')
        k(f'v_add_u32 v{c.vxa}, s{s_t0}, v{t2}')
        k(f'v_xor_b32 v{c.vxa+1}, 64, v{c.vxa}')
    else:
        k(f'v_lshlrev_b32 v{t2}, 11, v{t1}')
        k(f'v_lshl_add_u32 v{t2}, v{t0}, 4, v{t2}')
        k(f's_lshl_b32 s{s_t0}, s{s_wm}, 10')
        k(f'v_add_u32 v{c.vxa}, s{s_t0}, v{t2}')
        k(f'v_add_u32 v{c.vxa+1}, 8192, v{c.vxa}')
    k(f'v_bfe_u32 v{t0}, v{L}, 2, 2')
    k(f'v_lshl_add_u32 v{t0}, v{t1}, 3, v{t0}')
    emit_f(k,t2,t0,t3,Nt)
    k(f'v_mul_u32_u24 v{t0}, {P}, v{t0}')
    k(f'v_and_b32 v{t1}, 3, v{L}')
    k(f'v_lshl_add_u32 v{t0}, v{t1}, 3, v{t0}')
    k(f'v_add_u32 v{t0}, 16384, v{t0}')
    k(f's_mul_i32 s{s_t0}, s{s_wn}, {NT}')
    for b in range(c.nwb):
        k(f's_add_u32 s{s_t1}, s{s_t0}, {b}')
        k(f'v_xor_b32 v{t1}, s{s_t1}, v{t2}')
        k(f'v_lshl_add_u32 v{c.vwa+b}, v{t1}, 5, v{t0}')
    for i in range(2): k(f'v_add_u32 v{c.vxa2+i}, {c.split}, v{c.vxa+i}')
    for b in range(c.nwb): k(f'v_add_u32 v{c.vwa2+b}, {c.split}, v{c.vwa+b}')

def frag_reads(c,slot,ks,fset):
    P=c.Nt*2; so=slot*c.stage
    hi=so>=c.split; ofs=so-(c.split if hi else 0)
    xa=(c.vxa2 if hi else c.vxa)+ks; wa=(c.vwa2 if hi else c.vwa)
    xs=[];ws=[]
    for mt in range(4):
        r=c.fx[fset]+4*mt
        xs.append((f'ds_read_b128 {c.fxp}[{r}:{r+3}], v{xa} offset:{ofs+mt*(2048 if c.xmode=="rows" else 256)}',('x',fset,mt)))
    for t in range(c.NT):
        r=c.fw[fset]+4*t; b=t%c.nwb
        o=ofs+ks*32*P+(t-b)*32
        assert o+4*P<65536
        ws.append([(f'ds_read_b64_tr_b16 a[{r}:{r+1}], v{wa+b} offset:{o}',('w',fset,t)),
                   (f'ds_read_b64_tr_b16 a[{r+2}:{r+3}], v{wa+b} offset:{o+4*P}',('w',fset,t))])
    out=ws[0]+xs
    for w in ws[1:]: out+=w
    return out

def mfmas(c,fset):
    out=[]
    for t in range(c.NT):
        for mt in range(4):
            a=c.acc+4*(mt*c.NT+t); w=c.fw[fset]+4*t; x=c.fx[fset]+4*mt
            out.append((f'v_mfma_f32_16x16x32_bf16 v[{a}:{a+3}], a[{w}:{w+3}], {c.fxp}[{x}:{x+3}], v[{a}:{a+3}]',[('w',fset,t),('x',fset,mt)]))
    return out

class LQ:
    def __init__(self,k): self.k=k; self.q=[]
    def issue(self,ins,tag): self.k(ins); self.q.append(tag)
    def need(self,tags):
        idx=-1
        for i,t in enumerate(self.q):
            if t in tags: idx=i
        if idx>=0:
            n=len(self.q)-1-idx
            n=min(n,15)
            self.k(f's_waitcnt lgkmcnt({n})')
            if WPAD: self.k('s_nop 0')
            self.q=self.q[len(self.q)-n:] if n else []
    def drain(self):
        if self.q: self.k('s_waitcnt lgkmcnt(0)')
        self.q=[]

def phase(k,lq,mf,rd,bar_at=None,pre_bar=None,fill=None,fper=1,ftags=None):
    ri=0; n=len(mf)
    start=0 if bar_at is None else bar_at
    slots=n-start
    for i,(m,tags) in enumerate(mf):
        if WMERGE and i%4==0: tags=[t for mm in mf[i:i+4] for t in mm[1]]
        if ftags and i==0: tags=list(tags)+list(ftags)
        lq.need(tags); k(m)
        if bar_at is not None and i==bar_at:
            if lq.q or not WPAD: lq.drain()
            else: k('s_nop 0')
            if pre_bar: k(pre_bar)
            k('s_barrier')
        if i>=start:
            left=len(rd)-ri; rem=n-i
            cnt=1 if left<=rem else -(-left//rem)
            for _ in range(cnt):
                if ri<len(rd): lq.issue(*rd[ri]); ri+=1
        if fill:
            for _ in range(fper):
                if fill: k(fill.pop(0))
    assert ri==len(rd)

def compute_main(k,c,last_pre_bar=None):
    S=c.S; R=c.R
    lq=LQ(k)
    for x in getattr(c,'pre_P',[]): k(x)
    k('s_barrier')
    if STAMPS: k('s_memtime s[62:63]'); k('s_waitcnt lgkmcnt(0)')
    for r in frag_reads(c,0,0,0): lq.issue(*r)
    q0=list(lq.q)
    for x in getattr(c,'pre_loop',[]): k(x)
    if STAMPS: k('s_memtime s[92:93]')
    def stage(s,last=False,fill=None):
        slot=s%R
        fper=getattr(c,'fper',1)
        f0=f1=fill; p0=p1=fper; t0=t1=None
        if c.pfill:
            f0,p0,t0=c.pfill(0,False); f1,p1,t1=c.pfill(1,last)
        phase(k,lq,mfmas(c,0),frag_reads(c,slot,1,1),fill=f0,fper=p0,ftags=t0)
        phase(k,lq,mfmas(c,1),[] if last else frag_reads(c,(s+1)%R,0,0),bar_at=(None if last and getattr(c,'nolastbar',False) else c.bar_at),pre_bar=last_pre_bar if last else None,fill=f1,fper=p1,ftags=t1)
        if c.pfill:
            assert not f0
            for x in f1: k(x)
        if not last: assert lq.q==q0,(lq.q,q0)
    nloop=(S-1)//R if c.nloop is None else c.nloop
    k(f's_mov_b32 s{s_cnt}, {nloop}')
    Lb=k.newlabel('cm'); k('.p2align 3'); k.label(Lb)
    if c.loop_top: c.loop_top()
    for s in range(R): stage(s)
    k(f's_sub_u32 s{s_cnt}, s{s_cnt}, 1')
    k(f's_cmp_lg_u32 s{s_cnt}, 0')
    k(f's_cbranch_scc1 {Lb}')
    if STAMPS: k('s_memtime s[94:95]')
    for s in range(nloop*R,S): stage(s,s==S-1,c.fill)
    if c.fill:
        for f in c.fill: k(f)
    if STAMPS: k('s_memtime s[64:65]'); k('s_waitcnt lgkmcnt(0)')

def tile_map(k, ntn, xr, xc, idx='s17'):
    nxc=ntn//xc
    k(f's_lshr_b32 s{s_t0}, s28, {int(math.log2(nxc))}')
    k(f's_mul_i32 s{s_t0}, s{s_t0}, {xr}')
    k(f's_lshr_b32 s{s_t1}, s29, {int(math.log2(xc))}')
    k(f's_add_u32 s{s_rb}, s{s_t0}, s{s_t1}')
    k(f's_and_b32 s{s_t0}, s28, {nxc-1}')
    k(f's_mul_i32 s{s_t0}, s{s_t0}, {xc}')
    k(f's_and_b32 s{s_t1}, s29, {xc-1}')
    k(f's_add_u32 s{s_cb}, s{s_t0}, s{s_t1}')

def entry(k):
    k('s_cmp_ge_u32 s2, 256')
    k(f's_cbranch_scc1 {k.name}_end')
    if STAMPS: k('s_memtime s[60:61]'); k('s_memrealtime s[70:71]'); k('s_mov_b32 s92, 0'); k('s_mov_b32 s94, 0')
    srd(k,S_WS,'ws',WS_SIZE)
    k('v_lshrrev_b32 v2, 6, v0')
    k('v_and_b32 v1, 63, v0')
    k(f'v_readfirstlane_b32 s{s_wave}, v2')
    k('s_and_b32 s28, s2, 7')
    k('s_lshr_b32 s29, s2, 3')
    if DBGT=='ws':
        L=k.newlabel('nost')
        k('s_memrealtime s[70:71]')
        k('s_cmp_lg_u32 s2, 3')
        k(f's_cbranch_scc1 {L}')
        k('s_waitcnt lgkmcnt(0)')
        k('v_mov_b32 v2, s70'); k('v_mov_b32 v3, 0')
        k(f's_mov_b32 s70, {WS_STAMP}')
        k(f'buffer_store_dword v2, v3, s[4:7], s70 offen offset:{int(k.name[1])*4-4} sc1')
        k.label(L)
    elif DBGT:
        k('s_memrealtime s[70:71]')
        k('s_memtime s[60:61]')
        k(f's_load_dwordx2 s[76:77], s[0:1], {KA["dbg"]}')

def stamp_out(k,slot,wavesel=0):
    if DBGT and DBGT!='ws':
        k('s_waitcnt vmcnt(0)')
        k('s_memrealtime s[72:73]')
        k('s_memtime s[62:63]')
        k('s_waitcnt lgkmcnt(0)')
        k(f's_cmp_lg_u32 s{s_wave}, {wavesel}')
        k(f's_cbranch_scc1 {k.name}_end')
        k('s_and_b32 s74, s2, 127')
        k('s_cmp_lg_u32 s74, 3')
        k(f's_cbranch_scc1 {k.name}_end')
        k(f's_add_u32 s76, s76, {(3-slot)*512}')
        k('s_addc_u32 s77, s77, 0')
        k('s_mov_b32 s78, 256'); k('s_mov_b32 s79, 0x20000')
        k('s_lshr_b32 s74, s2, 7')
        k('s_lshl_b32 s74, s74, 3')
        k('v_mov_b32 v20, s70'); k('v_mov_b32 v21, s72'); k('v_mov_b32 v2, 0')
        k('s_mov_b64 exec, 1')
        k(f'buffer_store_dwordx2 v[20:21], v2, s[76:79], s74 offen offset:{slot*16}')
        return
    if not STAMPS: return
    k('s_memtime s[66:67]')
    k('s_waitcnt vmcnt(0)')
    k('s_memtime s[68:69]')
    k('s_memrealtime s[72:73]')
    k('s_waitcnt lgkmcnt(0)')
    k(f's_cmp_lg_u32 s{s_wave}, {wavesel}')
    k(f's_cbranch_scc1 {k.name}_end')
    k(f'''s_sub_u32 s62, s62, s60
    s_sub_u32 s64, s64, s60
    s_sub_u32 s66, s66, s60
    s_sub_u32 s68, s68, s60
    v_mov_b32 v20, s62
    v_mov_b32 v21, s64
    v_mov_b32 v22, s66
    v_mov_b32 v23, s68
    v_mov_b32 v24, s70
    v_mov_b32 v25, s72
    s_sub_u32 s92, s92, s60
    s_sub_u32 s94, s94, s60
    v_mov_b32 v26, s92
    v_mov_b32 v27, s94
    s_lshl_b32 s74, s2, 5
    s_add_u32 s74, s74, {WS_STAMP+slot*8192}
    v_mov_b32 v2, 0
    s_mov_b64 exec, 1
    buffer_store_dwordx4 v[20:23], v2, s[4:7], s74 offen
    buffer_store_dwordx4 v[24:27], v2, s[4:7], s74 offen offset:16''')

def rbf(k,dst,src):
    k(f'v_cvt_pk_bf16_f32 v{dst}, v{src}, v{src}')
    k(f'v_and_b32 v{dst}, 0xffff0000, v{dst}')

def ln_finish(k, vs, vq, t, out_m, out_rs):
    k(f'v_mul_f32 v{vs}, {f2u(1/1024):#x}, v{vs}')
    k(f'v_mul_f32 v{vq}, {f2u(1/1024):#x}, v{vq}')
    k(f'v_fma_f32 v{vq}, -v{vs}, v{vs}, v{vq}')
    k(f'v_max_f32 v{vq}, 0, v{vq}')
    rbf(k,out_m,vs)
    rbf(k,t,vq)
    k(f'v_add_f32 v{t}, {f2u(1e-5):#x}, v{t}')
    rbf(k,t,t)
    k(f'v_sqrt_f32 v{t}, v{t}')
    rbf(k,t,t)
    k(f'v_rcp_f32 v{out_rs}, v{t}')

def gelu_pairs(k, xs, tmp):
    n=len(xs)
    T=[tmp+2*i for i in range(n)]
    for x,t in zip(xs,T): k(f'v_pk_mul_f32 v[{t}:{t+1}], v[{x}:{x+1}], v[{x}:{x+1}]')
    for x,t in zip(xs,T): k(f'v_pk_fma_f32 v[{t}:{t+1}], v[{t}:{t+1}], s[44:45], v[{V_GA}:{V_GA+1}]')
    for x,t in zip(xs,T): k(f'v_pk_mul_f32 v[{t}:{t+1}], v[{t}:{t+1}], v[{x}:{x+1}]')
    for t in T:
        k(f'v_exp_f32 v{t}, v{t}'); k(f'v_exp_f32 v{t+1}, v{t+1}')
    for t in T: k(f'v_pk_add_f32 v[{t}:{t+1}], v[{t}:{t+1}], s[48:49]')
    for t in T:
        k(f'v_rcp_f32 v{t}, v{t}'); k(f'v_rcp_f32 v{t+1}, v{t+1}')
    for x,t in zip(xs,T): k(f'v_pk_mul_f32 v[{x}:{x+1}], v[{x}:{x+1}], v[{t}:{t+1}]')
V_GA=2

def gelu_consts(k):
    k(f's_mov_b32 s44, {f2u(GB):#x}'); k(f's_mov_b32 s45, {f2u(GB):#x}')
    k(f's_mov_b32 s48, 1.0'); k('s_mov_b32 s49, 1.0')
    k(f'v_mov_b32 v{V_GA}, {f2u(GA):#x}'); k(f'v_mov_b32 v{V_GA+1}, {f2u(GA):#x}')

def ln_gelu_epilogue(k,c,lds_rs,lds_cs,ncs,addr,tmp,csr,rsr,soff,late=(),bar=False):
    NT=c.NT
    k('v_and_b32 v4, 15, v1')
    k(f's_lshl_b32 s{s_t0}, s{s_wm}, 9')
    k(f's_add_u32 s{s_t0}, s{s_t0}, {lds_rs}')
    k(f'v_lshl_add_u32 v4, v4, 3, s{s_t0}')
    k('v_lshrrev_b32 v5, 4, v1')
    k(f's_mul_i32 s{s_t0}, s{s_wn}, {NT*64}')
    k(f's_add_u32 s{s_t0}, s{s_t0}, {lds_cs}')
    k(f'v_lshl_add_u32 v5, v5, 4, s{s_t0}')
    gelu_consts(k)
    if bar: k('s_barrier')
    for mt in range(4): k(f'ds_read_b64 v[{rsr+2*mt}:{rsr+2*mt+1}], v4 offset:{mt*128}')
    for t in range(NT):
        if t not in late: k(f'ds_read_b128 v[{csr[t]}:{csr[t]+3}], v5 offset:{t*64}')
    for p in range(1,ncs):
        for t in range(NT):
            k(f'ds_read_b128 v[{tmp+4*(t%4)}:{tmp+4*(t%4)+3}], v5 offset:{p*c.Nt*4+t*64}')
            if t%4==3 or t==NT-1:
                k('s_waitcnt lgkmcnt(0)')
                for u in range(t-t%4,t+1):
                    for h in (0,2): k(f'v_pk_add_f32 v[{csr[u]+h}:{csr[u]+h+1}], v[{csr[u]+h}:{csr[u]+h+1}], v[{tmp+4*(u%4)+h}:{tmp+4*(u%4)+h+1}]')
    k('s_waitcnt lgkmcnt(0)')
    def pre(tile,t,mt):
        a=c.acc+4*tile; rs=rsr+2*mt
        for h in (0,2):
            k(f'v_pk_mul_f32 v[{tmp+h}:{tmp+h+1}], v[{csr[t]+h}:{csr[t]+h+1}], v[{rs}:{rs+1}] op_sel:[0,1] op_sel_hi:[1,1]')
        for h in (0,2):
            k(f'v_pk_fma_f32 v[{a+h}:{a+h+1}], v[{a+h}:{a+h+1}], v[{rs}:{rs+1}], v[{tmp+h}:{tmp+h+1}] op_sel:[0,0,0] op_sel_hi:[1,0,1]')
    cnt=[0]
    def pair(tA,tB,av,mt_off):
        (tileA,t_a,mt_a),(tileB,t_b,mt_b)=tA,tB
        pre(tileA,t_a,mt_a); pre(tileB,t_b,mt_b)
        a=c.acc+4*tileA; b=c.acc+4*tileB
        gelu_pairs(k,[a,a+2,b,b+2],tmp)
        o=tmp+8+4*(cnt[0]%2); cnt[0]+=1
        k(f'v_cvt_pk_bf16_f32 v{o}, v{a}, v{a+1}')
        k(f'v_cvt_pk_bf16_f32 v{o+1}, v{a+2}, v{a+3}')
        k(f'v_cvt_pk_bf16_f32 v{o+2}, v{b}, v{b+1}')
        k(f'v_cvt_pk_bf16_f32 v{o+3}, v{b+2}, v{b+3}')
        k(f'v_permlane16_swap_b32 v{o}, v{o+2}')
        k(f'v_permlane16_swap_b32 v{o+1}, v{o+3}')
        k(f'buffer_store_dwordx4 v[{o}:{o+3}], v{av}, s[{S_WS}:{S_WS+3}], s{soff} offen offset:{mt_off*256} {ST}')
    for mt in range(4):
        for tp in range(NT//2):
            t=2*tp
            pair((mt*NT+t,t,mt),(mt*NT+t+1,t+1,mt),addr[tp],mt)
            if late and mt==0 and tp==0:
                for u in late: k(f'ds_read_b128 v[{csr[u]}:{csr[u]+3}], v5 offset:{u*64}')
            if late and mt==0 and tp==1: k('s_waitcnt lgkmcnt(0)')
        if NT%2 and mt%2==1:
            t=NT-1
            pair(((mt-1)*NT+t,t,mt-1),(mt*NT+t,t,mt),addr[NT//2],mt-1)

def finish(k):
    k.label(k.name+'_end')
    k('s_endpgm')
    k.lines,n=hazard.fix(k.lines)
    return k

class Rec:
    def __init__(self): self.l=[]
    def __call__(self,s):
        for x in s.strip('\n').split('\n'): self.l.append(x.strip())

def reduce8_to2(k, a):
    for i in range(4): k(f'v_permlane32_swap_b32 v{a+i}, v{a+4+i}')
    for i in range(4): k(f'v_add_f32 v{a+i}, v{a+i}, v{a+4+i}')
    for i in range(2): k(f'v_permlane16_swap_b32 v{a+i}, v{a+2+i}')
    for i in range(2): k(f'v_add_f32 v{a+i}, v{a+i}, v{a+2+i}')
def unp(k,dst,src):
    k(f'v_lshlrev_b32 v{dst}, 16, v{src}')
    k(f'v_and_b32 v{dst+1}, 0xffff0000, v{src}')
def cprime(k,dst,tmp):
    k(f'v_lshrrev_b32 v{dst}, 4, v1')
    k(f'v_and_b32 v{tmp}, 1, v{dst}')
    k(f'v_lshrrev_b32 v{dst}, 1, v{dst}')
    k(f'v_lshl_or_b32 v{dst}, v{tmp}, 1, v{dst}')
CONVSEL=4
PF=dict(k2w4b=True,k1w=True,k1t=False,k1x=True,k1n=True,k2h=False,k2w4=False,k2w3=False,k3m=False,k3w4=True,k3c3=True,k4c3=True)
G3MAP=(8,4)
K1BAR=True
ROT=[0,0,0]
AUXV=0

def gen_k1():
    c=mkcfg(128,1024,4,2048,'rows',0)
    if ROT[0]: c.rot=(1,1,4)
    LDS_RS=c.ring; LDS_CS=c.ring+1024
    k=Kernel('k1_kernel',256,512,c.ring+1024+512,vgpr=192,agpr=64)
    entry(k)
    srd(k,S_X,'q',2048*2048)
    srd(k,S_W,'w1',1024*2048)
    srd(k,76,'dbg',256)
    k('s_cmp_lt_u32 s29, 16')
    k('s_cbranch_scc1 k1_prep')
    k('s_sub_u32 s29, s29, 16')
    tile_map(k,8,4,4)
    k(f's_lshr_b32 s{s_t0}, s{s_cb}, 2')
    k(f's_add_u32 s{s_t0}, s{s_t0}, 1')
    k(f's_sub_u32 s{s_t1}, 0, s{s_t0}')
    k(f's_bitcmp1_b32 s{s_cb}, 1')
    k(f's_cselect_b32 s{s_t0}, s{s_t0}, s{s_t1}')
    k(f's_lshl_b32 s43, s{s_rb}, 7')
    k(f's_add_u32 s43, s43, s{s_t0}')
    k(f's_mov_b32 s{s_xo}, 0')
    k(f's_lshl_b32 s{s_wo}, s{s_cb}, 8')
    k(f's_cmp_ge_u32 s{s_wave}, 4')
    k('s_cbranch_scc1 k1_loader')
    c.vxa=6; c.vxa2=8; c.vwa=10; c.vwa2=14; c.acc=32; c.fx=(0,32); c.fw=(16,48)
    compute_setup(k,c)
    for i in range(64): k(f'v_mov_b32 v{c.acc+i}, 0')
    k('v_and_b32 v2, 15, v1')
    cprime(k,3,4)
    k('v_lshlrev_b32 v3, 15, v3')
    k('v_lshl_add_u32 v28, v2, 4, v3')
    k(f'v_add_u32 v29, {4*EP}, v28')
    k(f's_lshl_b32 s{s_t2}, s{s_cb}, 1')
    k(f's_add_u32 s{s_t2}, s{s_t2}, s{s_wn}')
    k(f's_lshl_b32 s{s_t2}, s{s_t2}, 18')
    k(f's_lshl_b32 s{s_t0}, s{s_rb}, 11')
    k(f's_add_u32 s{s_t2}, s{s_t2}, s{s_t0}')
    k(f's_lshl_b32 s{s_t0}, s{s_wm}, 10')
    k(f's_add_u32 s{s_t2}, s{s_t2}, s{s_t0}')
    if WS_H: k(f's_add_u32 s{s_t2}, s{s_t2}, {WS_H}')
    k('s_waitcnt lgkmcnt(0)')
    c.nolastbar=True
    compute_main(k,c)
    ln_gelu_epilogue(k,c,LDS_RS,LDS_CS,1,[28,29],96,[112,116,120,124],20,s_t2,bar=True)
    stamp_out(k,0)
    k('s_endpgm')
    k.label('k1_loader')
    loader_setup(k,c)
    def post():
        k(f's_add_u32 s80, s{S_WS}, {WS_AB}')
        k(f's_addc_u32 s81, s{S_WS+1}, 0')
        k('s_mov_b32 s82, 16384'); k('s_mov_b32 s83, 0x20000')
        k('v_and_b32 v2, 31, v1')
        k(f's_lshl_b32 s50, s{s_lw}, 5')
        k('v_add_u32 v2, s50, v2')
        k('v_add_u32 v3, s43, v2')
        k('v_lshlrev_b32 v20, 3, v3')
        k('v_lshlrev_b32 v21, 3, v2')
        k(f'v_add_u32 v21, {LDS_RS}, v21')
        k('v_lshrrev_b32 v3, 5, v1')
        k('v_lshlrev_b32 v3, 15, v3')
        k('v_lshl_add_u32 v22, v2, 2, v3')
        k('v_lshlrev_b32 v23, 2, v2')
        k(f'v_add_u32 v23, {LDS_CS}, v23')
        k(f's_lshl_b32 s50, s{s_cb}, 9')
        k(f's_add_u32 s50, s50, {WS_CS1}')
        k('v_and_b32 v24, 7, v1')
        k('v_lshlrev_b32 v24, 5, v24')
    c.post_issue=post
    k('s_waitcnt lgkmcnt(0)')
    loader_main(k,c)
    k.label('k1_poll')
    k('buffer_load_dword v25, v24, s[76:79], 0 offen sc1')
    k('s_waitcnt vmcnt(0)')
    k('v_cmp_gt_u32 vcc, 16, v25')
    k('s_nop 4')
    k('s_cbranch_vccz k1_ready')
    k('s_sleep 2')
    k('s_branch k1_poll')
    k.label('k1_ready')
    k('buffer_load_dwordx2 v[32:33], v20, s[80:83], 0 offen sc1')
    for p in range(8):
        k(f'buffer_load_dword v{34+p}, v22, s[{S_WS}:{S_WS+3}], s50 offen sc1')
        if p<7: k('s_add_u32 s50, s50, 4096')
    k('s_waitcnt vmcnt(0)')
    k('ds_write_b64 v21, v[32:33]')
    for p in range(1,8): k(f'v_add_f32 v34, v34, v{34+p}')
    k('v_mov_b32 v35, v34')
    k('v_permlane32_swap_b32 v34, v35')
    k('v_add_f32 v34, v34, v35')
    k('ds_write_b32 v23, v34')
    k('s_waitcnt lgkmcnt(0)')
    k('s_barrier')
    k('s_endpgm')
    k.label('k1_prep')
    srd(k,S_A,'k',2048*2048)
    srd(k,S_B,'v',2048*2048)
    srd(k,S_C,'shk',1024*8)
    srd(k,84,'w2',1024*2048)
    srd(k,88,'ssmk',1024*4096)
    k('s_lshl_b32 s57, s29, 3')
    k('s_add_u32 s57, s57, s28')
    k('s_lshl_b32 s58, s57, 3')
    k(f's_add_u32 s58, s58, s{s_wave}')
    k('s_lshl_b32 s51, s58, 12')
    k('s_lshl_b32 s59, s28, 4')
    k('s_add_u32 s59, s59, s29')
    k('s_lshl_b32 s50, s59, 3')
    k(f's_add_u32 s50, s50, s{s_wave}')
    k('s_lshl_b32 s50, s50, 12')
    k('s_lshr_b32 s92, s28, 1')
    k('s_lshl_b32 s92, s92, 2')
    k('s_lshr_b32 s53, s29, 2')
    k('s_add_u32 s92, s92, s53')
    k('s_and_b32 s93, s28, 1')
    k('s_lshl_b32 s93, s93, 2')
    k('s_and_b32 s53, s29, 3')
    k('s_add_u32 s93, s93, s53')
    k('s_lshl_b32 s52, s92, 17')
    k(f's_lshl_b32 s53, s{s_wave}, 14')
    k('s_add_u32 s52, s52, s53')
    k('s_lshl_b32 s53, s93, 8')
    k('s_add_u32 s52, s52, s53')
    k('s_add_u32 s53, s52, 8192')
    k('v_lshlrev_b32 v12, 4, v1')
    k('v_lshrrev_b32 v13, 4, v1')
    k('v_and_b32 v14, 15, v1')
    k('v_lshlrev_b32 v15, 4, v14')
    k('v_lshl_add_u32 v13, v13, 11, v15')
    k('s_waitcnt lgkmcnt(0)')
    XR=140; W1R=156
    for i in range(4): k(f'buffer_load_dwordx4 v[{XR+4*i}:{XR+4*i+3}], v12, s[{S_X}:{S_X+3}], s50 offen offset:{i*1024}')
    for i in range(2): k(f'buffer_load_dwordx4 v[{W1R+4*i}:{W1R+4*i+3}], v13, s[{S_W}:{S_W+3}], s{52+i} offen')
    k(f's_lshr_b32 s{s_rb}, s57, 2')
    k(f's_and_b32 s{s_cb}, s57, 3')
    k('v_and_b32 v2, 31, v0')
    k('v_lshrrev_b32 v3, 5, v0')
    k(f's_lshl_b32 s{s_t0}, s{s_rb}, 17')
    k(f's_lshl_b32 s{s_t1}, s{s_cb}, 9')
    k(f's_add_u32 s{s_t0}, s{s_t0}, s{s_t1}')
    k('v_lshlrev_b32 v4, 13, v3')
    k('v_lshl_add_u32 v4, v2, 4, v4')
    k(f'v_add_u32 v6, s{s_t0}, v4')
    k('v_subrev_u32 v7, 6144, v6')
    k('v_subrev_u32 v8, 2048, v6')
    k('v_add_u32 v9, 4096, v6')
    k('v_lshlrev_b32 v10, 6, v2')
    k(f's_lshl_b32 s{s_t2}, s{s_cb}, 11')
    k('v_lshlrev_b32 v15, 7, v14')
    k('s_lshl_b32 s54, s58, 11')
    k('v_lshlrev_b32 v14, 7, v2')
    k('s_mov_b32 s44, 0x3f803f80'); k('s_mov_b32 s45, 0x00003f80'); k('s_mov_b32 s46, 0x3f800000')
    A1=176
    KR=80; VR=108; SR=124; WR=16
    krows=[(7,0),(7,2048),(8,0),(6,0),(6,2048),(9,0),(9,2048)]
    def bulk():
        for i,(v,o) in enumerate(krows): k(f'buffer_load_dwordx4 v[{KR+4*i}:{KR+4*i+3}], v{v}, s[{S_A}:{S_A+3}], 0 offen offset:{o}')
        for i,(v,o) in enumerate(krows[3:]): k(f'buffer_load_dwordx4 v[{VR+4*i}:{VR+4*i+3}], v{v}, s[{S_B}:{S_B+3}], 0 offen offset:{o}')
        for i in range(4): k(f'buffer_load_dwordx4 v[{SR+4*i}:{SR+4*i+3}], v10, s[{S_C}:{S_C+3}], s{s_t2} offen offset:{16*i}')
        k('buffer_load_dword v16, v15, s[84:87], s54 offen')
        k('buffer_load_dword v16, v14, s[88:91], s51 offen')
    k('s_waitcnt vmcnt(0)')
    for i in range(12): k(f'v_mov_b32 v{A1+i}, 0')
    for d in range(8):
        for r in range(2):
            k(f'v_dot2c_f32_bf16 v{A1+8+2*r}, s44, v{XR+8*r+d}')
            k(f'v_dot2c_f32_bf16 v{A1+9+2*r}, v{XR+8*r+d}, v{XR+8*r+d}')
    for i in range(2):
        for d in range(4):
            k(f'v_dot2c_f32_bf16 v{A1+2*d}, s45, v{W1R+4*i+d}')
            k(f'v_dot2c_f32_bf16 v{A1+1+2*d}, s46, v{W1R+4*i+d}')
    for i in range(2): k(f'v_permlane32_swap_b32 v{A1+8+i}, v{A1+10+i}')
    for i in range(2): k(f'v_add_f32 v{A1+8+i}, v{A1+8+i}, v{A1+10+i}')
    reduce8_to2(k,A1)
    for sh in (8,4,2,1):
        for i in range(2): k(f'v_add_f32_dpp v{A1+8+i}, v{A1+8+i}, v{A1+8+i} row_ror:{sh} row_mask:0xf bank_mask:0xf')
    k('v_lshrrev_b32 v4, 4, v1')
    k('v_lshlrev_b32 v4, 3, v4')
    k('v_and_b32 v12, 15, v1')
    k('v_lshl_add_u32 v12, v12, 5, v4')
    k(f's_lshl_b32 s{s_t0}, s{s_wave}, 9')
    k(f'v_add_u32 v12, s{s_t0}, v12')
    k(f'ds_write_b64 v12, v[{A1}:{A1+1}] offset:36864')
    k(f's_lshl_b32 s{s_t0}, s{s_wave}, 5')
    k(f'v_add_u32 v4, s{s_t0}, v4')
    k(f'ds_write_b64 v4, v[{A1+8}:{A1+9}] offset:41216')
    k('s_waitcnt lgkmcnt(0)')
    k('s_barrier')
    k(f's_cmp_lg_u32 s{s_wave}, 0')
    k('s_cbranch_scc1 k1_noflag')
    k('v_lshlrev_b32 v4, 3, v1')
    for i in range(8): k(f'ds_read_b64 v[{XR+2*i}:{XR+2*i+1}], v4 offset:{36864+i*512}')
    k('v_and_b32 v12, 15, v1')
    k('v_lshlrev_b32 v13, 4, v12')
    k(f'ds_read_b128 v[{A1}:{A1+3}], v13 offset:41216')
    k('v_lshlrev_b32 v12, 3, v12')
    k('s_lshl_b32 s52, s92, 12')
    k('s_lshl_b32 s53, s93, 9')
    k('s_add_u32 s52, s52, s53')
    k(f's_add_u32 s52, s52, {WS_CS1}')
    k('s_lshl_b32 s53, s59, 7')
    k(f's_add_u32 s55, s53, {WS_ST1}')
    k(f's_add_u32 s53, s53, {WS_AB}')
    k('s_waitcnt lgkmcnt(0)')
    for i in range(1,8):
        for h in range(2): k(f'v_add_f32 v{XR+h}, v{XR+h}, v{XR+2*i+h}')
    k(f'buffer_store_dwordx2 v[{XR}:{XR+1}], v4, s[{S_WS}:{S_WS+3}], s52 offen sc1')
    S,Q=A1,A1+1
    k(f'v_add_f32 v{S}, v{S}, v{A1+2}'); k(f'v_add_f32 v{Q}, v{Q}, v{A1+3}')
    M,RS=A1+4,A1+5
    ln_finish(k,S,Q,A1+2,M,RS)
    k(f'v_sub_f32 v{S}, v{S}, v{M}')
    k(f'v_mul_f32 v{S}, v{S}, v{RS}')
    k(f'v_mul_f32 v{Q}, v{Q}, v{RS}')
    k(f'v_mul_f32 v{Q}, v{Q}, v{RS}')
    rbf(k,S,S); rbf(k,Q,Q)
    k(f'v_add_f32 v{Q}, {f2u(1e-5):#x}, v{Q}')
    rbf(k,Q,Q)
    k(f'v_sqrt_f32 v{Q}, v{Q}')
    k(f'v_fma_f32 v{S}, v{M}, v{RS}, v{S}')
    rbf(k,Q,Q)
    k(f'v_rcp_f32 v{Q}, v{Q}')
    k(f'v_mul_f32 v{M}, v{M}, v{RS}')
    k(f'v_sub_f32 v{M}, 0, v{M}')
    k(f'v_mul_f32 v{A1+6}, v{RS}, v{Q}')
    k(f'v_mul_f32 v{A1+7}, v{S}, v{Q}')
    k(f'v_sub_f32 v{A1+7}, 0, v{A1+7}')
    k('s_mov_b64 exec, 0xffff')
    k(f'buffer_store_dwordx2 v[{A1+6}:{A1+7}], v12, s[{S_WS}:{S_WS+3}], s53 offen sc1')
    k(f'buffer_store_dwordx2 v[{M}:{RS}], v12, s[{S_WS}:{S_WS+3}], s55 offen sc1')
    k('v_mov_b32 v12, 1'); k('v_mov_b32 v13, 0')
    k('s_lshl_b32 s55, s28, 5')
    k('s_mov_b64 exec, 1')
    k('s_waitcnt vmcnt(0)')
    k('buffer_atomic_add v12, v13, s[76:79], s55 offen sc1')
    k('s_mov_b64 exec, -1')
    if STAMPS: k('s_memtime s[62:63]')
    k.label('k1_noflag')
    if K1BAR: k('s_barrier')
    bulk()
    k('s_waitcnt vmcnt(2)')
    KU=48; SU=140; VU=76; AC=156; OUT=160
    for half in range(2):
        for r in range(7):
            for d in range(2): unp(k,KU+4*r+2*d, KR+4*r+2*half+d)
        for e in range(4):
            ch=4*half+e
            k(f'v_lshlrev_b32 v{SU+0+e}, 16, v{SR+2*ch}')
            k(f'v_and_b32 v{SU+4+e}, 0xffff0000, v{SR+2*ch}')
            k(f'v_lshlrev_b32 v{SU+8+e}, 16, v{SR+2*ch+1}')
            k(f'v_and_b32 v{SU+12+e}, 0xffff0000, v{SR+2*ch+1}')
        for rho in range(4):
            for d in range(2): unp(k,VU+2*d, VR+4*rho+2*half+d)
            for j in (3,2,1,0):
                for h in (0,2):
                    kk=KU+4*(rho+3-j)+h; ss=SU+4*j+h
                    if j==3: k(f'v_pk_mul_f32 v[{AC+h}:{AC+h+1}], v[{kk}:{kk+1}], v[{ss}:{ss+1}]')
                    else: k(f'v_pk_fma_f32 v[{AC+h}:{AC+h+1}], v[{kk}:{kk+1}], v[{ss}:{ss+1}], v[{AC+h}:{AC+h+1}]')
            for h in (0,2): k(f'v_pk_mul_f32 v[{AC+h}:{AC+h+1}], v[{AC+h}:{AC+h+1}], v[{VU+h}:{VU+h+1}]')
            for d in range(2): k(f'v_cvt_pk_bf16_f32 v{OUT+4*rho+2*half+d}, v{AC+2*d}, v{AC+2*d+1}')
    TP=544
    k(f'v_mul_u32_u24 v4, {TP}, v3')
    k('v_lshl_add_u32 v4, v2, 4, v4')
    for rho in range(4): k(f'ds_write_b128 v4, v[{OUT+4*rho}:{OUT+4*rho+3}] offset:{rho*(16*TP+128)}')
    k('s_waitcnt lgkmcnt(0)')
    k('s_barrier')
    k('v_lshrrev_b32 v4, 4, v1')
    k(f'v_mul_u32_u24 v5, {16*TP+128}, v4')
    k('v_bfe_u32 v6, v1, 2, 2')
    k(f'v_mul_u32_u24 v6, {TP}, v6')
    k('v_add_u32 v5, v5, v6')
    k('v_and_b32 v6, 3, v1')
    k('v_lshl_add_u32 v5, v6, 3, v5')
    k(f's_lshl_b32 s{s_t0}, s{s_wave}, 6')
    k(f'v_add_u32 v5, s{s_t0}, v5')
    RO=48
    for dg in range(2):
        for h in range(4):
            r=RO+dg*8+2*h
            k(f'ds_read_b64_tr_b16 v[{r}:{r+1}], v5 offset:{dg*32+h*4*TP}')
    k('v_and_b32 v6, 15, v1')
    k('v_lshlrev_b32 v6, 12, v6')
    k('v_lshl_add_u32 v6, v4, 5, v6')
    k(f's_lshl_b32 s{s_t2}, s{s_cb}, 20')
    k(f's_lshl_b32 s{s_t3}, s{s_wave}, 17')
    k(f's_add_u32 s{s_t2}, s{s_t2}, s{s_t3}')
    k(f's_lshl_b32 s{s_t3}, s{s_rb}, 7')
    k(f's_add_u32 s{s_t2}, s{s_t2}, s{s_t3}')
    k(f's_add_u32 s{s_t2}, s{s_t2}, {WS_KVT}')
    k(f's_add_u32 s{s_t3}, s{s_t2}, 65536')
    k('s_waitcnt lgkmcnt(0)')
    for dg in range(2):
        for hq in range(2):
            r=RO+dg*8+hq*4
            k(f'buffer_store_dwordx4 v[{r}:{r+3}], v6, s[{S_WS}:{S_WS+3}], s{s_t3 if dg else s_t2} offen offset:{hq*16}')
    if STAMPS: k('s_memtime s[64:65]')
    k.label('k1_pend')
    stamp_out(k,0)
    return finish(k)

def gen_k2():
    c=mkcfg(128,1024,4,2048,'chunk',EP)
    if ROT[1]: c.rot=(1,1,4)
    c.nolastbar=True
    k=Kernel('k2_kernel',256,512,c.ring,vgpr=192,agpr=64)
    entry(k)
    k('s_cmp_lt_u32 s29, 16')
    k('s_cbranch_scc1 k2_conv')
    k('s_sub_u32 s29, s29, 16')
    srd(k,S_W,'w2',1024*2048)
    srd(k,S_X,'q',2048*2048)
    tile_map(k,8,4,4)
    k(f's_lshl_b32 s{s_xo}, s{s_rb}, 11')
    if WS_H: k(f's_add_u32 s{s_xo}, s{s_xo}, {WS_H}')
    k(f's_lshl_b32 s{s_wo}, s{s_cb}, 8')
    k(f's_cmp_ge_u32 s{s_wave}, 4')
    k('s_cbranch_scc1 k2_loader')
    c.vxa=6; c.vxa2=8; c.vwa=10; c.vwa2=14; c.acc=32; c.fx=(0,32); c.fw=(16,48)
    compute_setup(k,c)
    for i in range(64): k(f'v_mov_b32 v{c.acc+i}, 0')
    k('v_and_b32 v2, 15, v1')
    cprime(k,3,4)
    k('v_lshlrev_b32 v4, 11, v2')
    k('v_lshl_add_u32 v18, v3, 4, v4')
    k('v_lshlrev_b32 v19, 3, v2')
    k(f's_lshl_b32 s{s_t0}, s{s_rb}, 1')
    k(f's_add_u32 s{s_t0}, s{s_t0}, s{s_wm}')
    k(f's_lshl_b32 s{s_t1}, s{s_cb}, 1')
    k(f's_add_u32 s{s_t1}, s{s_t1}, s{s_wn}')
    k(f's_lshl_b32 s50, s{s_t0}, 17')
    k(f's_lshl_b32 s51, s{s_t1}, 7')
    k('s_add_u32 s50, s50, s51')
    k(f's_lshl_b32 s51, s{s_t0}, 9')
    k(f's_add_u32 s52, s51, {WS_ST1}')
    k(f's_lshl_b32 s53, s{s_t1}, 14')
    k('s_add_u32 s53, s53, s51')
    k(f's_add_u32 s53, s53, {WS_ST3}')
    k(f's_lshl_b32 s54, s{s_t1}, 18')
    k(f's_lshl_b32 s51, s{s_t0}, 10')
    k('s_add_u32 s54, s54, s51')
    k(f's_add_u32 s54, s54, {WS_X1}')
    k('v_lshlrev_b32 v3, 15, v3')
    k('v_lshl_add_u32 v28, v2, 4, v3')
    k(f'v_add_u32 v29, {4*EP}, v28')
    RAW=96; XN=128
    f=Rec()
    for mt in range(4): f(f'buffer_load_dwordx2 v[{20+2*mt}:{21+2*mt}], v19, s[{S_WS}:{S_WS+3}], s52 offen offset:{mt*128}')
    for mt in range(4):
        for tp in range(2):
            r=RAW+4*(2*mt+tp)
            f(f'buffer_load_dwordx4 v[{r}:{r+3}], v18, s[{S_X}:{S_X+3}], s50 offen offset:{tp*64}')
        if mt<3: f('s_add_u32 s50, s50, 32768')
    c.pre_P=f.l
    f=Rec()
    f('s_waitcnt vmcnt(0)')
    for mt in range(4):
        for tp in range(2):
            r=RAW+4*(2*mt+tp)
            f(f'v_permlane16_swap_b32 v{r}, v{r+2}')
            f(f'v_permlane16_swap_b32 v{r+1}, v{r+3}')
        for tp in range(2):
            r=RAW+4*(2*mt+tp); a=XN+4*(mt*4+2*tp); rs=20+2*mt
            for d in range(4): unp(f,a+2*d,r+d)
            for d in range(8): f(f'v_fma_f32 v{a+d}, v{a+d}, v{rs+1}, v{rs}')
            for d in range(4): f(f'v_cvt_pk_bf16_f32 v{r+d}, v{a+2*d}, v{a+2*d+1}')
            for d in range(4): unp(f,a+2*d,r+d)
    for i in range(8): f(f'v_mov_b32 v{20+i}, 0')
    c.fill=f.l; c.nloop=2
    k('s_mov_b32 s44, 0x3f803f80')
    k('s_waitcnt lgkmcnt(0)')
    compute_main(k,c)
    n=0
    for mt in range(4):
        for tp in range(2):
            a=c.acc+4*(mt*4+2*tp); x=XN+4*(mt*4+2*tp); o=RAW+4*n; n+=1
            for d in range(4): k(f'v_pk_add_f32 v[{a+2*d}:{a+2*d+1}], v[{a+2*d}:{a+2*d+1}], v[{x+2*d}:{x+2*d+1}]')
            for d in range(4): k(f'v_cvt_pk_bf16_f32 v{o+d}, v{a+2*d}, v{a+2*d+1}')
            k(f'v_permlane16_swap_b32 v{o}, v{o+2}')
            k(f'v_permlane16_swap_b32 v{o+1}, v{o+3}')
            k(f'buffer_store_dwordx4 v[{o}:{o+3}], v{28+tp}, s[{S_WS}:{S_WS+3}], s54 offen offset:{mt*256} {ST}')
    n=0
    for mt in range(4):
        for tp in range(2):
            o=RAW+4*n; n+=1
            for d in range(4):
                k(f'v_dot2c_f32_bf16 v{20+2*mt}, s44, v{o+d}')
                k(f'v_dot2c_f32_bf16 v{21+2*mt}, v{o+d}, v{o+d}')
    reduce8_to2(k,20)
    k('v_lshlrev_b32 v2, 3, v1')
    k(f'buffer_store_dwordx2 v[20:21], v2, s[{S_WS}:{S_WS+3}], s53 offen {ST}')
    stamp_out(k,1)
    k('s_endpgm')
    k.label('k2_loader')
    loader_setup(k,c)
    k('s_waitcnt lgkmcnt(0)')
    loader_main(k,c)
    k('s_endpgm')
    k.label('k2_conv')
    srd(k,S_X,'ssmk',1024*4096)
    srd(k,S_W,'w4',3584*2048)
    srd(k,S_B,'w3',1024*7168)
    k(f's_load_dwordx2 s[16:17], s[0:1], {KA["ssmD"]}')
    k('s_lshl_b32 s58, s29, 3')
    k(f's_add_u32 s58, s58, s{s_wave}')
    k('s_lshl_b32 s29, s29, 3')
    k('s_add_u32 s29, s29, s28')
    k('s_lshl_b32 s29, s29, 3')
    k(f's_add_u32 s29, s29, s{s_wave}')
    WBS=8832; UO=4224
    k(f's_mul_i32 s50, s{s_wave}, {WBS}')
    k('s_lshl_b32 s51, s29, 12')
    k(f's_add_u32 s52, s51, {WS_KVT}')
    k(f's_add_u32 s53, s51, {WS_Y2T}')
    k('s_lshr_b32 s54, s29, 1')
    k('s_lshl_b32 s54, s54, 2')
    k('v_lshlrev_b32 v2, 4, v1')
    k('v_lshlrev_b32 v12, 7, v1')
    k('v_lshrrev_b32 v3, 1, v1')
    k('v_and_b32 v4, 1, v1')
    k('v_lshlrev_b32 v4, 4, v4')
    k('v_lshl_add_u32 v11, v3, 7, v4')
    k(f's_mul_i32 s59, s29, {56*128}')
    k('s_waitcnt lgkmcnt(0)')
    k('s_load_dword s55, s[16:17], s54')
    k('s_add_u32 m0, s50, 32')
    for i in range(4): k(f'buffer_load_dwordx4 v2, s[{S_X}:{S_X+3}], s51 offen offset:{i*1024} lds')
    for r in range(4):
        k(f's_add_u32 m0, s50, {UO+128+r*1152-r*32}')
        k(f'buffer_load_dwordx4 v11, s[{S_WS}:{S_WS+3}], s52 offen offset:{r*32} lds')
    npf=0
    if PF['k2h']:
        k('s_lshl_b32 s46, s58, 15')
        k('s_lshr_b32 s47, s28, 1')
        k('s_lshl_b32 s47, s47, 13')
        k('s_add_u32 s46, s46, s47')
        if WS_H: k(f's_add_u32 s46, s46, {WS_H}')
        k(f'buffer_load_dword v13, v12, s[{S_WS}:{S_WS+3}], s46 offen'); npf+=1
    if PF['k2w4']:
        k(f'buffer_load_dword v13, v12, s[{S_W}:{S_W+3}], s59 offen'); npf+=1
    k('v_lshrrev_b32 v3, 3, v1')
    k('v_mul_u32_u24 v3, 1152, v3')
    k('v_and_b32 v4, 7, v1')
    k('v_lshl_add_u32 v3, v4, 4, v3')
    k(f'v_add_u32 v3, {UO}, v3')
    k('v_and_b32 v4, 1, v1')
    k('v_lshlrev_b32 v4, 4, v4')
    k('v_cmp_gt_u32 vcc, 32, v1')
    k('v_cndmask_b32 v3, v4, v3, vcc')
    k('v_add_u32 v3, s50, v3')
    for i in range(32): k(f'v_mov_b32 v{32+i}, 0')
    k('ds_write_b128 v3, v[32:35]')
    k('v_lshrrev_b32 v3, 4, v1')
    k('v_bfe_u32 v4, v1, 2, 2')
    k('v_and_b32 v5, 3, v1')
    k('v_lshlrev_b32 v6, 6, v3')
    k('v_lshl_add_u32 v6, v4, 3, v6')
    k('v_lshlrev_b32 v5, 3, v5')
    k('v_sub_u32 v6, v5, v6')
    k('v_add_u32 v6, 224, v6')
    k('v_add_u32 v6, s50, v6')
    k('v_and_b32 v4, 15, v1')
    k('v_lshlrev_b32 v7, 3, v4')
    k('v_lshl_add_u32 v7, v3, 4, v7')
    k(f'v_add_u32 v7, {UO+128-120}, v7')
    k('v_add_u32 v7, s50, v7')
    k('v_lshlrev_b32 v8, 3, v4')
    k('v_lshl_add_u32 v8, v3, 1, v8')
    k(f'v_add_u32 v8, {UO+128}, v8')
    k('v_add_u32 v8, s50, v8')
    k('v_subrev_u32 v9, 16, v1')
    k('v_add_u32 v10, 47, v1')
    k('v_cmp_gt_u32 vcc, 16, v1')
    k('v_cndmask_b32 v9, v9, v10, vcc')
    k('v_mov_b32 v10, 63')
    k('v_cmp_eq_u32 vcc, 0, v1')
    k('v_cndmask_b32 v9, v9, v10, vcc')
    k('v_lshlrev_b32 v9, 2, v9')
    k('v_and_b32 v5, 1, v3')
    k('v_lshlrev_b32 v10, 9, v5')
    k('v_lshl_add_u32 v10, v4, 5, v10')
    k('v_lshrrev_b32 v5, 1, v3')
    k('v_lshl_add_u32 v10, v5, 4, v10')
    k('v_cmp_eq_u32 s[56:57], 63, v1')
    k('s_lshr_b32 s58, s29, 3')
    k('s_lshl_b32 s58, s58, 2')
    k(f's_add_u32 s58, s58, s{s_wave}')
    k('s_mul_i32 s46, s58, 2341')
    k('s_lshr_b32 s46, s46, 16')
    k('s_mul_i32 s47, s46, 28')
    k('s_sub_u32 s47, s58, s47')
    k(f's_mul_i32 s48, s46, {64*7168}')
    k('s_lshl_b32 s49, s47, 8')
    k('s_add_u32 s48, s48, s49')
    k(f's_mul_i32 s46, s46, {3584*4}')
    k('s_lshl_b32 s47, s47, 9')
    k('s_add_u32 s46, s46, s47')
    k(f's_add_u32 s46, s46, {WS_CS3}')
    k('v_mul_u32_u24 v14, 7168, v3')
    k('v_lshl_add_u32 v14, v4, 4, v14')
    k('v_lshlrev_b32 v15, 3, v3')
    k('v_lshl_add_u32 v15, v4, 5, v15')
    k(f's_waitcnt vmcnt({npf}) lgkmcnt(0)')
    if STAMPS: k('s_memtime s[62:63]'); k('s_waitcnt lgkmcnt(0)')
    k('s_bitcmp1_b32 s29, 0')
    k('s_cselect_b32 s54, 0, 16')
    k('s_lshl_b32 s55, s55, s54')
    k('s_and_b32 s55, s55, 0xffff0000')
    lq=LQ(k)
    ACC=64
    Z=lambda rho,T: ACC+4*(rho*8+T)
    items=[]
    for i in range(8):
        for rho in range(4):
            items.append((-1+i,rho)); items.append((14-i,rho))
    NB=4; BB=16
    def bread(n):
        e,rho=items[n]; r=BB+4*(n%NB); o=rho*1152+64*(e+1)
        lq.issue(f'ds_read_b64 v[{r}:{r+1}], v7 offset:{o}',('b',n))
        lq.issue(f'ds_read_b64 v[{r+2}:{r+3}], v7 offset:{o+8}',('b',n))
    def aread(jj):
        for h in range(2):
            lq.issue(f'ds_read_b64_tr_b16 a[{4*jj+2*h}:{4*jj+2*h+1}], v6 offset:{256*jj+32*(1-h)}',('a',jj))
    bread(0)
    for jj in (1,3,5,7,9,11,13,15,0): aread(jj)
    bread(1); bread(2)
    pend_a=[2,4,6,8,10,12,14]
    for n,(e,rho) in enumerate(items):
        r=BB+4*(n%NB)
        first=True
        for T in range(8):
            jj=2*T-e
            if jj<0 or jj>15: continue
            lq.need([('b',n),('a',jj)])
            z=Z(rho,T)
            k(f'v_mfma_f32_16x16x32_bf16 v[{z}:{z+3}], a[{4*jj}:{4*jj+3}], v[{r}:{r+3}], {"0" if e==-1 else f"v[{z}:{z+3}]"}')
            if first:
                first=False
                if n+3<len(items): bread(n+3)
            elif pend_a: aread(pend_a.pop(0))
    if STAMPS: k('s_memtime s[64:65]'); k('s_waitcnt lgkmcnt(0)')
    lq.drain()
    for T in range(8):
        for r in range(4): k(f'ds_read_u16_d16_hi v{32+4*T+r}, v8 offset:{r*1152+T*128}')
    for T in range(8):
        z0,z1,z2,z3=[Z(r,T) for r in range(4)]
        k(f'v_add_f32 v{z1+3}, v{z1+3}, v{z2+2}')
        k(f'v_add_f32 v{z1+3}, v{z1+3}, v{z3+1}')
        k(f'v_add_f32 v{z2+3}, v{z2+3}, v{z3+2}')
    k('v_mov_b32 v11, 0')
    for T in range(7,-1,-1):
        for rho in (1,2,3):
            prev=f'v{Z(rho,T-1)+3}' if T else 'v11'
            k(f'v_cndmask_b32 v{Z(rho,T)+3}, v{Z(rho,T)+3}, {prev}, s[56:57]')
    for T in range(8):
        for rho in (1,2,3): k(f'ds_bpermute_b32 v{Z(rho,T)+3}, v9, v{Z(rho,T)+3}')
    for T in range(8):
        z0,z1,z2,z3=[Z(r,T) for r in range(4)]
        k(f'v_add_f32 v{z0+1}, v{z0+1}, v{z1}')
        k(f'v_add_f32 v{z0+2}, v{z0+2}, v{z1+1}')
        k(f'v_add_f32 v{z0+3}, v{z0+3}, v{z1+2}')
        k(f'v_add_f32 v{z0+2}, v{z0+2}, v{z2}')
        k(f'v_add_f32 v{z0+3}, v{z0+3}, v{z2+1}')
        k(f'v_add_f32 v{z0+3}, v{z0+3}, v{z3}')
    k('s_waitcnt lgkmcnt(0)')
    for T in range(8):
        z0=Z(0,T)
        for r in range(4): k(f'v_fmac_f32 v{z0+r}, s55, v{32+4*T+r}')
        for r in range(3): k(f'v_add_f32 v{z0+r}, v{z0+r}, v{Z(r+1,T)+3}')
    for T in range(0,8,2):
        o=16+4*(T//2); a=Z(0,T); b=Z(0,T+1)
        k(f'v_cvt_pk_bf16_f32 v{o}, v{a}, v{a+1}')
        k(f'v_cvt_pk_bf16_f32 v{o+1}, v{a+2}, v{a+3}')
        k(f'v_cvt_pk_bf16_f32 v{o+2}, v{b}, v{b+1}')
        k(f'v_cvt_pk_bf16_f32 v{o+3}, v{b+2}, v{b+3}')
        k(f'v_permlane16_swap_b32 v{o}, v{o+2}')
        k(f'v_permlane16_swap_b32 v{o+1}, v{o+3}')
        k(f'buffer_store_dwordx4 v[{o}:{o+3}], v10, s[{S_WS}:{S_WS+3}], s53 offen offset:{T*512}')
    k(f's_cmp_ge_u32 s{s_wave}, 4')
    k('s_cbranch_scc1 k2_cend')
    k('s_cmp_ge_u32 s58, 448')
    k('s_cbranch_scc1 k2_cend')
    for i in range(16):
        k(f'buffer_load_dwordx4 v[{96+4*i}:{99+4*i}], v14, s[{S_B}:{S_B+3}], s48 offen')
        if i<15: k(f's_add_u32 s48, s48, {4*7168}')
    if PF['k2w4b']:
        k(f's_mul_i32 s59, s58, {128*128}')
        k(f'buffer_load_dword v13, v12, s[{S_W}:{S_W+3}], s59 offen')
        k(f's_add_u32 s59, s59, 8192')
        k(f'buffer_load_dword v13, v12, s[{S_W}:{S_W+3}], s59 offen')
    for i in range(16):
        k(f's_waitcnt vmcnt({15-i+(2 if PF["k2w4b"] else 0)})')
        for d in range(4):
            r=96+4*i+d
            if i==0: unp(k,32+2*d,r)
            else:
                unp(k,40+2*d,r)
        if i:
            for d in range(8): k(f'v_add_f32 v{32+d}, v{32+d}, v{40+d}')
    reduce8_to2(k,32)
    k(f'buffer_store_dwordx2 v[32:33], v15, s[{S_WS}:{S_WS+3}], s46 offen')
    k.label('k2_cend')
    stamp_out(k,1,wavesel=CONVSEL)
    return finish(k)

K4C3_AHEAD=960
K3PF_ROWS=1024
def gen_k3():
    c=mkcfg(224,1024,3,7168,'chunk',EP)
    if ROT[2]: c.rot=(1,2,8) if G3MAP==(8,4) else (2,1,8)
    LDS_RS=c.ring; LDS_CS=c.ring+1024
    k=Kernel('k3_kernel',256,512,c.ring+2048,vgpr=168,agpr=88)
    entry(k)
    srd(k,S_W,'w3',1024*7168)
    srd(k,S_A,'w4',3584*2048)
    tile_map(k,16,*G3MAP)
    k(f's_lshl_b32 s{s_xo}, s{s_rb}, 11')
    k(f's_add_u32 s{s_xo}, s{s_xo}, {WS_X1}')
    k(f's_mul_i32 s{s_wo}, s{s_cb}, 448')
    k(f's_cmp_ge_u32 s{s_wave}, 4')
    k('s_cbranch_scc1 k3_loader')
    c.vxa=6; c.vxa2=8; c.vwa=10; c.vwa2=12; c.acc=32; c.fx=(0,44); c.fw=(16,60)
    compute_setup(k,c)
    for i in range(112): k(f'v_mov_b32 v{c.acc+i}, 0')
    k('v_and_b32 v2, 15, v1')
    cprime(k,3,4)
    k('v_lshlrev_b32 v3, 15, v3')
    k('v_lshl_add_u32 v28, v2, 4, v3')
    k(f'v_add_u32 v29, {4*EP}, v28')
    k(f'v_add_u32 v30, {8*EP}, v28')
    k('v_lshrrev_b32 v3, 5, v1')
    k('v_lshlrev_b32 v3, 15, v3')
    k('v_and_b32 v4, 31, v1')
    k('v_lshl_add_u32 v31, v4, 4, v3')
    k(f'v_add_u32 v31, {12*EP}, v31')
    k(f's_lshl_b32 s{s_t0}, s{s_cb}, 1')
    k(f's_add_u32 s{s_t0}, s{s_t0}, s{s_wn}')
    k(f's_mul_i32 s{s_t2}, s{s_t0}, {14*EP}')
    k(f's_lshl_b32 s{s_t0}, s{s_rb}, 11')
    k(f's_add_u32 s{s_t2}, s{s_t2}, s{s_t0}')
    k(f's_lshl_b32 s{s_t0}, s{s_wm}, 10')
    k(f's_add_u32 s{s_t2}, s{s_t2}, s{s_t0}')
    k(f's_add_u32 s{s_t2}, s{s_t2}, {WS_H3}')
    if PF['k3m']:
        k('v_lshrrev_b32 v18, 3, v1')
        k('v_min_u32 v18, 6, v18')
        k('v_and_b32 v19, 7, v1')
        k('v_lshlrev_b32 v19, 7, v19')
        k('v_lshl_add_u32 v18, v18, 11, v19')
        k('s_lshl_b32 s50, s29, 2')
        k(f's_add_u32 s50, s50, s{s_wave}')
        k('s_mul_i32 s50, s50, 7')
        k('s_lshr_b32 s51, s28, 1')
        k('s_mul_i32 s51, s51, 896')
        k('s_add_u32 s50, s50, s51')
        k('s_lshl_b32 s50, s50, 11')
        k('s_and_b32 s51, s28, 1')
        k('s_lshl_b32 s51, s51, 10')
        k('s_add_u32 s50, s50, s51')
        c.pre_loop=[f'buffer_load_dword v19, v18, s[{S_A}:{S_A+3}], s50 offen']
    k('s_waitcnt lgkmcnt(0)')
    compute_main(k,c)
    ln_gelu_epilogue(k,c,LDS_RS,LDS_CS,1,[28,29,30,31],144,[160,164,6,10,14,32,36],20,s_t2,late=(5,6))
    stamp_out(k,2)
    k('s_endpgm')
    k.label('k3_loader')
    loader_setup(k,c)
    def post():
        k('v_and_b32 v2, 31, v1')
        k('v_lshrrev_b32 v3, 5, v1')
        k('v_lshlrev_b32 v20, 3, v2')
        k('v_lshl_add_u32 v21, v3, 17, v20')
        k(f's_lshl_b32 s50, s{s_rb}, 10')
        k(f's_lshl_b32 s51, s{s_lw}, 8')
        k('s_add_u32 s50, s50, s51')
        k(f's_add_u32 s50, s50, {WS_ST3}')
        k(f'v_add_u32 v20, s51, v20')
        k(f'v_add_u32 v20, {LDS_RS}, v20')
        k('v_lshlrev_b32 v22, 2, v1')
        k(f's_mul_i32 s51, s{s_lw}, 224')
        k(f's_mul_i32 s52, s{s_cb}, 896')
        k('s_add_u32 s52, s52, s51')
        k(f's_add_u32 s52, s52, {WS_CS3}')
        k(f's_add_u32 s51, s51, {LDS_CS}')
        k('v_add_u32 v23, s51, v22')
        k('v_lshrrev_b32 v24, 3, v1')
        k('v_and_b32 v25, 7, v1')
        k('v_lshlrev_b32 v25, 7, v25')
        k('v_lshl_add_u32 v24, v24, 11, v25')
        k('s_lshl_b32 s54, s29, 2')
        k(f's_add_u32 s54, s54, s{s_lw}')
        k('s_lshl_b32 s54, s54, 14')
        k('s_and_b32 s55, s28, 1')
        k('s_lshl_b32 s55, s55, 10')
        k('s_add_u32 s54, s54, s55')
        k('v_min_u32 v27, 27, v1')
        k('v_lshlrev_b32 v27, 11, v27')
        k('s_lshl_b32 s56, s29, 2')
        k(f's_add_u32 s56, s56, s{s_lw}')
        k(f's_mul_i32 s56, s56, {28*2048}')
        k('s_add_u32 s56, s56, s55')
    c.post_issue=post
    def tail(s):
        if s==c.S-c.R:
            for p in range(8):
                k(f'buffer_load_dwordx2 v[{32+2*p}:{33+2*p}], v21, s[{S_WS}:{S_WS+3}], s50 offen')
                if p<7: k('s_add_u32 s50, s50, 16384')
            for p in range(16):
                k(f'buffer_load_dword v{48+p}, v22, s[{S_WS}:{S_WS+3}], s52 offen')
                if p<15: k(f's_add_u32 s52, s52, {3584*4}')
            return 24
        if s==c.S-2:
            k('s_waitcnt vmcnt(0)')
            if PF['k3w4']:
                for i in range(K3PF_ROWS//1024):
                    k(f'buffer_load_dword v26, v24, s[{S_A}:{S_A+3}], s54 offen')
                    k(f's_add_u32 s54, s54, {1024*2048}')
            if PF['k3c3']: k(f'buffer_load_dword v26, v27, s[{S_A}:{S_A+3}], s56 offen offset:384')
            for p in range(1,8):
                k(f'v_add_f32 v32, v32, v{32+2*p}'); k(f'v_add_f32 v33, v33, v{33+2*p}')
            k('v_mov_b32 v34, v32'); k('v_mov_b32 v35, v33')
            k('v_permlane32_swap_b32 v32, v34')
            k('v_permlane32_swap_b32 v33, v35')
            k('v_add_f32 v32, v32, v34'); k('v_add_f32 v33, v33, v35')
            ln_finish(k,32,33,34,36,38)
            k('v_mul_f32 v39, v36, v38')
            k('v_sub_f32 v39, 0, v39')
            k('ds_write_b64 v20, v[38:39]')
            for p in range(1,16): k(f'v_add_f32 v48, v48, v{48+p}')
            k('ds_write_b32 v23, v48')
        return 0
    c.tail=tail
    k('s_waitcnt lgkmcnt(0)')
    loader_main(k,c)
    return finish(k)

def gen_k4():
    c=mkcfg(64,3584,5,2048,'chunk',EP)
    c.nolastbar=True
    LDS_Y=c.ring
    k=Kernel('k4_kernel',256,512,c.ring+16384,vgpr=192,agpr=48)
    entry(k)
    srd(k,S_W,'w4',3584*2048)
    srd(k,S_X,'q',2048*2048)
    srd(k,S_A,'out',2048*2048)
    tile_map(k,16,4,8)
    k(f's_lshl_b32 s{s_xo}, s{s_rb}, 11')
    k(f's_add_u32 s{s_xo}, s{s_xo}, {WS_H3}')
    k(f's_lshl_b32 s{s_wo}, s{s_cb}, 7')
    k(f's_cmp_ge_u32 s{s_wave}, 4')
    k('s_cbranch_scc1 k4_loader')
    c.vxa=6; c.vxa2=8; c.vwa=10; c.vwa2=12; c.acc=32; c.fx=(0,24); c.fw=(16,40)
    compute_setup(k,c)
    for i in range(32): k(f'v_mov_b32 v{c.acc+i}, 0')
    k('v_and_b32 v2, 15, v1')
    cprime(k,3,4)
    k('v_lshlrev_b32 v4, 11, v2')
    k('v_lshl_add_u32 v18, v3, 4, v4')
    k('v_lshlrev_b32 v19, 3, v2')
    k(f's_lshl_b32 s{s_t0}, s{s_rb}, 1')
    k(f's_add_u32 s{s_t0}, s{s_t0}, s{s_wm}')
    k(f's_lshl_b32 s50, s{s_t0}, 17')
    k(f's_lshl_b32 s51, s{s_cb}, 7')
    k('s_add_u32 s50, s50, s51')
    k(f's_lshl_b32 s51, s{s_wn}, 6')
    k('s_add_u32 s50, s50, s51')
    k(f's_lshl_b32 s51, s{s_t0}, 9')
    k(f's_add_u32 s52, s51, {WS_ST1}')
    k(f's_lshl_b32 s54, s{s_cb}, 18')
    k(f's_lshl_b32 s51, s{s_wn}, 17')
    k('s_add_u32 s54, s54, s51')
    k('s_mov_b32 s55, s54')
    k(f's_lshl_b32 s51, s{s_t0}, 10')
    k('s_add_u32 s54, s54, s51')
    k(f's_add_u32 s54, s54, {WS_X1}')
    k('v_lshlrev_b32 v3, 15, v3')
    k('v_lshl_add_u32 v28, v2, 4, v3')
    k('v_lshrrev_b32 v3, 3, v1')
    k('v_and_b32 v4, 7, v1')
    k('v_lshlrev_b32 v4, 4, v4')
    k('v_lshl_add_u32 v29, v3, 12, v4')
    k(f's_lshl_b32 s51, s{s_t0}, 7')
    k('s_add_u32 s55, s55, s51')
    k(f's_add_u32 s55, s55, {WS_Y2T}')
    k(f's_lshl_b32 s56, s{s_wave}, 12')
    k(f's_add_u32 s56, s56, {LDS_Y}')
    k('v_lshrrev_b32 v3, 2, v1')
    k('v_and_b32 v4, 3, v1')
    k('v_lshlrev_b32 v4, 3, v4')
    k('v_lshl_add_u32 v3, v3, 7, v4')
    k('v_add_u32 v30, s56, v3')
    R1=64; RX=80; XF=96; PFR=128; YR=160
    X1F=lambda mt: (80+8*mt if mt<2 else 176+8*(mt-2))
    f=Rec()
    for mt in range(4): f(f'buffer_load_dwordx4 v[{R1+4*mt}:{R1+4*mt+3}], v28, s[{S_WS}:{S_WS+3}], s54 offen offset:{mt*256}')
    for mt in range(4): f(f'buffer_load_dwordx2 v[{20+2*mt}:{21+2*mt}], v19, s[{S_WS}:{S_WS+3}], s52 offen offset:{mt*128}')
    for mt in range(4):
        f(f's_add_u32 s51, s50, {mt*32768}')
        f(f'buffer_load_dwordx4 v[{RX+4*mt}:{RX+4*mt+3}], v18, s[{S_X}:{S_X+3}], s51 offen')
    for i in range(4):
        f(f's_add_u32 m0, s56, {i*1024}')
        f(f'buffer_load_dwordx4 v29, s[{S_WS}:{S_WS+3}], s55 offen lds')
        if i<3: f('s_add_u32 s55, s55, 32768')
    c.pre_loop=f.l
    if PF['k4c3']:
        k('v_min_u32 v31, 2, v1')
        k('v_lshlrev_b32 v31, 11, v31')
        k('s_lshl_b32 s57, s29, 2')
        k(f's_add_u32 s57, s57, s{s_wave}')
        k('s_mul_i32 s57, s57, 5')
        k('s_lshr_b32 s57, s57, 1')
        k(f's_add_u32 s57, s57, {K4C3_AHEAD}')
        k('s_lshl_b32 s57, s57, 11')
        k('s_and_b32 s51, s28, 1')
        k('s_lshl_b32 s51, s51, 10')
        k('s_add_u32 s57, s57, s51')
        def top():
            k(f'buffer_load_dword v17, v31, s[{S_W}:{S_W+3}], s57 offen offset:384')
            k(f's_add_u32 s57, s57, {320*2048}')
        c.loop_top=top
    f=Rec()
    f('s_waitcnt vmcnt(0)')
    for mt in range(4):
        for t in range(2):
            r=YR+4*mt+2*t
            f(f'ds_read_b64_tr_b16 v[{r}:{r+1}], v30 offset:{t*2048+mt*32}')
    for mt in range(4):
        for r in (R1+4*mt,RX+4*mt):
            f(f'v_permlane16_swap_b32 v{r}, v{r+2}')
            f(f'v_permlane16_swap_b32 v{r+1}, v{r+3}')
    for mt in range(4):
        rs=20+2*mt
        for d in range(4): unp(f,XF+8*mt+2*d,RX+4*mt+d)
        for d in range(4):
            x=XF+8*mt+2*d; p=PFR+8*mt+2*d
            f(f'v_fma_f32 v{p}, v{x}, v{rs+1}, v{rs}')
            f(f'v_fma_f32 v{p+1}, v{x+1}, v{rs+1}, v{rs}')
    f('s_waitcnt lgkmcnt(0)')
    for mt in range(4):
        for d in range(4): unp(f,176+2*d,YR+4*mt+d)
        for d in range(4):
            p=PFR+8*mt+2*d
            f(f'v_mul_f32 v{p}, v{p}, v{176+2*d}')
            f(f'v_mul_f32 v{p+1}, v{p+1}, v{177+2*d}')
    for mt in range(4):
        for d in range(4): unp(f,X1F(mt)+2*d,R1+4*mt+d)
    c.fill=f.l; c.nloop=10; c.fper=2
    k(f's_mov_b32 s44, {f2u(-LOG2E):#x}'); k(f's_mov_b32 s45, {f2u(-LOG2E):#x}')
    k('s_mov_b32 s48, 1.0'); k('s_mov_b32 s49, 1.0')
    k('s_waitcnt lgkmcnt(0)')
    compute_main(k,c)
    for mt in range(4):
        a=c.acc+8*mt; t=R1+8*(mt%2); o=YR+4*mt; x1=X1F(mt)
        for d in range(4): k(f'v_pk_add_f32 v[{a+2*d}:{a+2*d+1}], v[{a+2*d}:{a+2*d+1}], v[{x1+2*d}:{x1+2*d+1}]')
        for d in range(4): k(f'v_pk_mul_f32 v[{t+2*d}:{t+2*d+1}], v[{a+2*d}:{a+2*d+1}], s[44:45]')
        for d in range(8): k(f'v_exp_f32 v{t+d}, v{t+d}')
        for d in range(4): k(f'v_pk_mul_f32 v[{a+2*d}:{a+2*d+1}], v[{a+2*d}:{a+2*d+1}], v[{PFR+8*mt+2*d}:{PFR+8*mt+2*d+1}]')
        for d in range(4): k(f'v_pk_add_f32 v[{t+2*d}:{t+2*d+1}], v[{t+2*d}:{t+2*d+1}], s[48:49]')
        for d in range(8): k(f'v_rcp_f32 v{t+d}, v{t+d}')
        for d in range(4):
            x=XF+8*mt+2*d
            k(f'v_pk_fma_f32 v[{t+2*d}:{t+2*d+1}], v[{t+2*d}:{t+2*d+1}], v[{a+2*d}:{a+2*d+1}], v[{x}:{x+1}]')
        for d in range(4): k(f'v_cvt_pk_bf16_f32 v{o+d}, v{t+2*d}, v{t+2*d+1}')
        k(f's_add_u32 s51, s50, {mt*32768}')
        k(f'v_permlane16_swap_b32 v{o}, v{o+2}')
        k(f'v_permlane16_swap_b32 v{o+1}, v{o+3}')
        k(f'buffer_store_dwordx4 v[{o}:{o+3}], v18, s[{S_A}:{S_A+3}], s51 offen {STO}')
    stamp_out(k,3)
    k('s_endpgm')
    k.label('k4_loader')
    loader_setup(k,c)
    k('s_waitcnt lgkmcnt(0)')
    loader_main(k,c)
    return finish(k)
```

```python
import sys, gen
from asmlib import *
gen.DBGT='ws'
def probe(name,a,b,M=4):
    k=Kernel(name,1,64,0,vgpr=32)
    k('s_cmp_ge_u32 s2, 1')
    k(f's_cbranch_scc1 {name}_end')
    k('s_memrealtime s[20:21]')
    k('s_load_dwordx2 s[4:5], s[0:1], 104')
    k('s_waitcnt lgkmcnt(0)')
    k(f's_add_u32 s4, s4, {gen.WS_STAMP}')
    k('s_addc_u32 s5, s5, 0')
    k('s_load_dwordx4 s[8:11], s[4:5], 0')
    k('s_waitcnt lgkmcnt(0)')
    k('s_mov_b32 s12, s20')
    k(f's_sub_u32 s14, s{8+b}, s{8+a}')
    k('s_min_u32 s14, s14, 10000')
    k(f's_mul_i32 s14, s14, {M}')
    k.label(name+'_l')
    k('s_memrealtime s[22:23]')
    k('s_waitcnt lgkmcnt(0)')
    k('s_sub_u32 s15, s22, s20')
    k('s_cmp_lt_u32 s15, s14')
    k(f's_cbranch_scc1 {name}_l')
    k.label(name+'_end')
    k('s_endpgm')
    return k
ks=[gen.gen_k1(),gen.gen_k2(),gen.gen_k3(),gen.gen_k4()]
for i,(a,b) in enumerate([(0,0),(0,1),(1,2),(2,3),(3,4)]):
    build_file(ks+[probe('p_kernel',a,b)],f'vP{i}.s')
```
